```python
import torch

def _softmax(x, axis=-1):
    return torch.softmax(x, dim=axis)
def _gelu(x):
    return torch.nn.functional.gelu(x, approximate="tanh")
def _silu(x):
    return torch.nn.functional.silu(x)
def _sigmoid(x):
    return torch.sigmoid(x)
def _layernorm(x, axis=-1, eps=1e-5):
    m = x.mean(dim=axis, keepdim=True)
    v = x.var(dim=axis, keepdim=True, unbiased=False)
    return (x - m) / torch.sqrt(v + eps)
def _scatter_add(tgt, idx, src, axis=0):
    return tgt.clone().index_add_(axis, idx, src)
def _segment_sum(src, seg, n):
    out = torch.zeros((n,) + src.shape[1:], dtype=src.dtype)
    return out.index_add_(0, seg, src)
def _pad(x, pw):
    flat = tuple(v for pair in reversed(pw) for v in pair)
    return torch.nn.functional.pad(x, flat)

kernel_name = 'parallel_sum__sliding_local_dilated__moe_arch_mod__prompt'

def setup_inputs():

    _w = (lambda a: (lambda t: t.to(torch.bfloat16) if t.is_floating_point() else t)(torch.as_tensor(a)))
    def _A_setup():
        B, S, D = 1, 2048, 1024
        return {
            "x": _w((lambda *s: torch.randn(*s, dtype=torch.bfloat16) * 0.05)(B, S, D)),
            "wqkv": _w((lambda *s: torch.randn(*s, dtype=torch.bfloat16) * 0.05)(D, 3 * D)),
            "wo": _w((lambda *s: torch.randn(*s, dtype=torch.bfloat16) * 0.05)(D, D)),
        }
    _A_in = _A_setup()

    def _B_setup():
        B, S, D, F, C = 1, 2048, 1024, 3584, 8
        return {
            "x": _w((lambda *s: torch.randn(*s, dtype=torch.bfloat16) * 0.05)(B, S, D)),
            "w_r": _w((lambda *s: torch.randn(*s, dtype=torch.bfloat16) * 0.05)(D)),
            "w_gate": _w((lambda *s: torch.randn(*s, dtype=torch.bfloat16) * 0.05)(D, F)),
            "w_up": _w((lambda *s: torch.randn(*s, dtype=torch.bfloat16) * 0.05)(D, F)),
            "w_down": _w((lambda *s: torch.randn(*s, dtype=torch.bfloat16) * 0.05)(F, D)),
        }
    _B_in = _B_setup()

    return {
        "A_x": _A_in["x"],
        "A_wqkv": _A_in["wqkv"],
        "A_wo": _A_in["wo"],
        "B_x": _B_in["x"],
        "B_w_r": _B_in["w_r"],
        "B_w_gate": _B_in["w_gate"],
        "B_w_up": _B_in["w_up"],
        "B_w_down": _B_in["w_down"],
    }

def reference(A_x, A_wqkv, A_wo, B_x, B_w_r, B_w_gate, B_w_up, B_w_down):
    def _A_ref(x, wqkv, wo):
        B, S, D = x.shape
        H = 32; Dh = D // H
        W, dil = 8, 2
        qkv = (lambda x, *d: x.permute(*d))((x @ wqkv).reshape(B, S, 3, H, Dh), 2, 0, 3, 1, 4)
        q, k, v = qkv[0], qkv[1], qkv[2]
        scale = Dh ** -0.5
        pos = torch.arange(S)
        off = torch.arange(W) * dil
        idx = pos[:, None] - off[None, :]
        mask = idx >= 0
        idx_c = torch.where(mask, idx, 0).reshape(-1)
        kg = k[:, :, idx_c, :].reshape(B, H, S, W, Dh)
        vg = v[:, :, idx_c, :].reshape(B, H, S, W, Dh)
        logits = torch.einsum("bhsd,bhswd->bhsw", q, kg) * scale
        logits = torch.where(mask[None, None, :, :], logits, -1e9)
        attn = _softmax(logits, axis=-1)
        o = torch.einsum("bhsw,bhswd->bhsd", attn, vg)
        return (lambda x, *d: x.permute(*d))(o, 0, 2, 1, 3).reshape(B, S, D) @ wo

    def _B_ref(x, w_r, w_gate, w_up, w_down):
        B, S, D = x.shape
        C = 8
        r = x @ w_r
        idx = torch.argsort(-r, axis=-1)[:, :C]
        idx_e = (lambda x, n, axis: torch.repeat_interleave(x, n, dim=axis))(idx.reshape(B, C, 1), D, axis=2)
        x_sel = (lambda x, i, axis: torch.take_along_dim(x, i, dim=axis))(x, idx_e, axis=1)
        g = _silu(x_sel @ w_gate)
        u = x_sel @ w_up
        y = (g * u) @ w_down
        r_sel = _sigmoid((lambda x, i, axis: torch.take_along_dim(x, i, dim=axis))(r, idx, axis=1))
        y = y * r_sel.reshape(B, C, 1)
        b_off = (torch.arange(B) * S).reshape(B, 1)
        flat_idx = (idx + b_off).reshape(B * C)
        zero = (x * 0.0).reshape(B * S, D)
        upd = _scatter_add(zero, flat_idx, y.reshape(B * C, D), axis=0)
        return x + upd.reshape(B, S, D)

    x = A_x
    xn = _layernorm(x, axis=-1)
    return x + _A_ref(xn, A_wqkv, A_wo) + _B_ref(xn, B_w_r, B_w_gate, B_w_up, B_w_down)
```

```python
NAME = "parallel_sum__sliding_local_dilated__moe_arch_mod__prompt"

class Asm:
    def __init__(self):
        self.l = []
        self.uid = 0
    def __call__(self, s):
        for ln in s.strip("\n").split("\n"):
            self.l.append("    " + ln.strip() if not ln.strip().endswith(":") else ln.strip())
    def label(self, base):
        self.uid += 1
        return f"L_{base}_{self.uid}"
    def text(self):
        return "\n".join(self.l) + "\n"

def srd(a, s, ptr, nbytes):
    a(f"s_mov_b32 s{s}, s{ptr}")
    a(f"s_and_b32 s{s+1}, s{ptr+1}, 0xffff")
    a(f"s_mov_b32 s{s+2}, {nbytes}")
    a(f"s_mov_b32 s{s+3}, 0x20000")

def kernel_begin(a, name):
    a.l.append(".text")
    a.l.append(f".globl {name}")
    a.l.append(".p2align 8")
    a.l.append(f".type {name},@function")
    a.l.append(f"{name}:")

def kernel_desc(name, vgpr, sgpr=102, accum=None):
    if accum is None:
        accum = min(256, (vgpr + 3) // 4 * 4)
    return f""".section .rodata,"a"
.p2align 6
.amdhsa_kernel {name}
  .amdhsa_next_free_vgpr {vgpr}
  .amdhsa_next_free_sgpr {sgpr}
  .amdhsa_accum_offset {accum}
  .amdhsa_group_segment_fixed_size 0
  .amdhsa_kernarg_size 88
  .amdhsa_user_sgpr_count 2
  .amdhsa_user_sgpr_kernarg_segment_ptr 1
  .amdhsa_system_sgpr_workgroup_id_x 1
  .amdhsa_float_denorm_mode_32 3
.end_amdhsa_kernel
"""

def file_text(launches, body, descs):
    h = ""
    for (k, g, b, lds) in launches:
        h += f"; @launch kernel={k} grid=({g},1,1) block=({b},1,1) lds={lds}\n"
    h += '.amdgcn_target "amdgcn-amd-amdhsa--gfx950"\n'
    return h + body + "".join(descs)
```

```python
import sys
from asmgen import *
import hazard

XN_OFF = 0
KEY_OFF = 4 << 20
SEL_OFF = (4 << 20) + 65536
O_OFF = 8 << 20
GU_OFF = 16 << 20
YP_OFF = 20 << 20
DPPF = "row_mask:0xf bank_mask:0xf"

def wave_id(a, sreg, vtmp=1):
    a(f"v_lshrrev_b32 v{vtmp}, 6, v0\nv_and_b32 v0, 63, v0\nv_readfirstlane_b32 s{sreg}, v{vtmp}")

def row_reduce(a, op, v):
    for m in ("quad_perm:[1,0,3,2]", "quad_perm:[2,3,0,1]", "row_half_mirror", "row_mirror"):
        a(f"{op}_dpp v{v}, v{v}, v{v} {m} {DPPF}")

def xrow_reduce(a, op, v, t):
    a(f"v_mov_b32 v{t}, v{v}\nv_permlane16_swap_b32 v{t}, v{v}\n{op} v{v}, v{v}, v{t}")
    a(f"v_mov_b32 v{t}, v{v}\nv_permlane32_swap_b32 v{t}, v{v}\n{op} v{v}, v{v}, v{t}")

def bf16r(a, d, s):
    a(f"v_cvt_pk_bf16_f32 v{d}, v{s}, v{s}\nv_lshlrev_b32 v{d}, 16, v{d}")

def unpack(a, d, s):
    a(f"v_lshlrev_b32 v{d}, 16, v{s}\nv_and_b32 v{d+1}, 0xffff0000, v{s}")

def srd_off(a, s, ptr, off, nbytes):
    a(f"s_add_u32 s{s}, s{ptr}, {off}\ns_addc_u32 s{s+1}, s{ptr+1}, 0\ns_and_b32 s{s+1}, s{s+1}, 0xffff\ns_mov_b32 s{s+2}, {nbytes}\ns_mov_b32 s{s+3}, 0x20000")

def k_ln(a):
    kernel_begin(a, "ln_kernel")
    a("s_cmp_ge_u32 s2, 256\ns_cbranch_scc1 L_ln_end")
    a("s_load_dwordx2 s[4:5], s[0:1], 0\ns_load_dwordx2 s[6:7], s[0:1], 32\ns_load_dwordx2 s[8:9], s[0:1], 80")
    wave_id(a, 3)
    a("s_lshl_b32 s10, s2, 3\ns_add_u32 s10, s10, s3\ns_lshl_b32 s11, s10, 11\nv_lshlrev_b32 v1, 4, v0")
    a("s_waitcnt lgkmcnt(0)")
    srd(a, 12, 4, 4 << 20); srd(a, 16, 6, 2048); srd_off(a, 20, 8, XN_OFF, 4 << 20); srd_off(a, 24, 8, KEY_OFF, 8192)
    a("buffer_load_dwordx4 v[4:7], v1, s[12:15], s11 offen\nbuffer_load_dwordx4 v[8:11], v1, s[12:15], s11 offen offset:1024")
    a("buffer_load_dwordx4 v[12:15], v1, s[16:19], 0 offen\nbuffer_load_dwordx4 v[16:19], v1, s[16:19], 0 offen offset:1024")
    a("s_waitcnt vmcnt(2)")
    for i in range(8): unpack(a, 20 + 2 * i, 4 + i)
    a("v_add_f32 v36, v20, v21")
    for i in range(2, 16): a(f"v_add_f32 v36, v36, v{20+i}")
    row_reduce(a, "v_add_f32", 36); xrow_reduce(a, "v_add_f32", 36, 37)
    a("v_mul_f32 v36, 0x3a800000, v36")
    a("v_sub_f32 v38, v20, v36\nv_mul_f32 v39, v38, v38")
    for i in range(1, 16): a(f"v_sub_f32 v38, v{20+i}, v36\nv_fmac_f32 v39, v38, v38")
    row_reduce(a, "v_add_f32", 39); xrow_reduce(a, "v_add_f32", 39, 37)
    a("v_mul_f32 v39, 0x3a800000, v39")
    bf16r(a, 36, 36); bf16r(a, 39, 39)
    a("v_add_f32 v39, 0x3727c5ac, v39"); bf16r(a, 39, 39)
    a("v_sqrt_f32 v39, v39"); bf16r(a, 39, 39)
    a("v_rcp_f32 v39, v39")
    for i in range(8):
        d = 20 + 2 * i
        a(f"v_sub_f32 v{d}, v{d}, v36\nv_sub_f32 v{d+1}, v{d+1}, v36\nv_cvt_pk_bf16_f32 v{d+1}, v{d}, v{d+1}")
        unpack(a, d, d + 1)
        a(f"v_mul_f32 v{d}, v{d}, v39\nv_mul_f32 v{d+1}, v{d+1}, v39\nv_cvt_pk_bf16_f32 v{4+i}, v{d}, v{d+1}")
    a("buffer_store_dwordx4 v[4:7], v1, s[20:23], s11 offen\nbuffer_store_dwordx4 v[8:11], v1, s[20:23], s11 offen offset:1024")
    a("s_waitcnt vmcnt(2)\nv_mov_b32 v40, 0")
    for i in range(8): a(f"v_dot2c_f32_bf16 v40, v{4+i}, v{12+i}")
    row_reduce(a, "v_add_f32", 40); xrow_reduce(a, "v_add_f32", 40, 37)
    a("v_cvt_pk_bf16_f32 v40, v40, v40\nv_and_b32 v40, 0xffff0000, v40")
    a("v_ashrrev_i32 v41, 31, v40\nv_or_b32 v41, 0x80000000, v41\nv_xor_b32 v40, v40, v41\nv_and_b32 v40, 0xffff0000, v40")
    a("s_sub_u32 s10, 2047, s10\nv_or_b32 v40, s10, v40\ns_lshr_b32 s11, s11, 9\nv_mov_b32 v1, 0")
    a("s_mov_b64 exec, 1\nbuffer_store_dword v40, v1, s[24:27], s11 offen")
    a("L_ln_end:\ns_endpgm")
    return kernel_desc("ln_kernel", 48)

def top8(a, kv, tv, sres, stmp):
    for i in range(32): a(f"v_not_b32 v{kv+i}, v{kv+i}")
    a(f"s_mov_b32 s{stmp}, 0")
    for r in range(8):
        for i in range(32): a(f"v_subrev_u32 v{tv+i}, s{stmp}, v{kv+i}")
        a(f"v_min_u32 v{tv+32}, v{tv}, v{tv+1}")
        for i in range(2, 32, 2): a(f"v_min3_u32 v{tv+32}, v{tv+32}, v{tv+i}, v{tv+i+1}")
        row_reduce(a, "v_min_u32", tv + 32)
        for g in range(4): a(f"v_readlane_b32 s{stmp+1+g}, v{tv+32}, {16*g}")
        a(f"s_min_u32 s{stmp+1}, s{stmp+1}, s{stmp+2}\ns_min_u32 s{stmp+3}, s{stmp+3}, s{stmp+4}\ns_min_u32 s{stmp+1}, s{stmp+1}, s{stmp+3}")
        a(f"s_add_u32 s{stmp}, s{stmp}, s{stmp+1}\ns_not_b32 s{sres+r}, s{stmp}\ns_add_u32 s{stmp}, s{stmp}, 1")

def tr_addr_std(a, d, t):
    a(f"v_lshrrev_b32 v{d}, 4, v0\nv_bfe_u32 v{t}, v0, 2, 2\nv_lshl_add_u32 v{d}, v{d}, 3, v{t}\nv_lshlrev_b32 v{d}, 7, v{d}")
    a(f"v_and_b32 v{t}, 3, v0\nv_lshl_add_u32 v{d}, v{t}, 3, v{d}")
    a(f"v_bfe_u32 v{t}, v0, 3, 2\nv_lshl_add_u32 v{d}, v{t}, 5, v{d}")

def tr_addr_perm(a, d, t):
    a(f"v_lshrrev_b32 v{d}, 2, v0\nv_lshlrev_b32 v{d}, 7, v{d}")
    a(f"v_and_b32 v{t}, 3, v0\nv_lshl_add_u32 v{d}, v{t}, 3, v{d}")
    a(f"v_bfe_u32 v{t}, v0, 3, 2\nv_lshl_add_u32 v{d}, v{t}, 5, v{d}")

def dma(a, m0expr, vaddr, srdr, soff, flags=""):
    a(f"{m0expr}\ns_nop 0\nbuffer_load_dwordx4 v{vaddr}, s[{srdr}:{srdr+3}], {soff} offen {flags} lds")

def k_gu(a):
    kernel_begin(a, "gu_kernel")
    a("s_cmp_ge_u32 s2, 224\ns_cbranch_scc1 L_gu_end")
    a("s_load_dwordx4 s[4:7], s[0:1], 40\ns_load_dwordx2 s[8:9], s[0:1], 80")
    wave_id(a, 3)
    a("s_lshr_b32 s10, s2, 2\ns_and_b32 s11, s2, 3")
    a("s_waitcnt lgkmcnt(0)")
    srd(a, 12, 4, 1024 * 7168); srd(a, 16, 6, 1024 * 7168)
    srd_off(a, 20, 8, XN_OFF, 4 << 20); srd_off(a, 24, 8, KEY_OFF, 131072); srd_off(a, 28, 8, GU_OFF, 224 * 4096)
    a("v_lshlrev_b32 v1, 4, v0")
    for i in range(8): a(f"s_mov_b32 s32, {i*1024}\nbuffer_load_dwordx4 v[{64+4*i}:{67+4*i}], v1, s[24:27], s32 offen")
    a("v_lshrrev_b32 v2, 3, v0\nv_and_b32 v3, 7, v0\nv_and_b32 v4, 2, v2\nv_xor_b32 v3, v3, v4")
    a("v_mul_u32_u24 v2, 7168, v2\nv_lshl_add_u32 v5, v3, 4, v2\nv_xor_b32 v6, 64, v5")
    a("s_lshl_b32 s33, s11, 2\ns_add_u32 s33, s33, s3\ns_mul_i32 s33, s33, %d\ns_lshl_b32 s34, s10, 7\ns_add_u32 s33, s33, s34" % (64 * 7168))
    a("s_lshl_b32 s34, s3, 13")
    for n in range(8):
        dma(a, f"s_add_u32 m0, s34, {n*1024}", 5 + (n & 1), 12, "s33")
        dma(a, f"s_add_u32 m0, s34, {32768 + n*1024}", 5 + (n & 1), 16, "s33")
        a(f"s_add_u32 s33, s33, {8*7168}")
    a("s_waitcnt vmcnt(16)")
    top8(a, 64, 96, 40, 50)
    a("v_mov_b32 v7, s40")
    for i in range(1, 8): a(f"v_writelane_b32 v7, s{40+i}, {i}")
    a("s_cmp_lg_u32 s2, 0\ns_cbranch_scc1 L_gu_nosel\nv_lshlrev_b32 v8, 2, v0\ns_mov_b64 exec, 0xff\ns_mov_b32 s32, 65536\nbuffer_store_dword v7, v8, s[24:27], s32 offen\ns_mov_b64 exec, -1\nL_gu_nosel:")
    a("v_and_b32 v8, 7, v0\nv_lshlrev_b32 v8, 2, v8\nds_bpermute_b32 v7, v8, v7\ns_waitcnt lgkmcnt(0)")
    a("v_and_b32 v7, 0x7ff, v7\nv_sub_u32 v7, 2047, v7\nv_lshlrev_b32 v7, 11, v7\nv_lshrrev_b32 v8, 4, v0\nv_lshl_add_u32 v7, v8, 4, v7")
    a("s_lshl_b32 s33, s11, 9")
    for kk in range(8): a(f"buffer_load_dwordx4 v[{64+4*kk}:{67+4*kk}], v7, s[20:23], s33 offen offset:{kk*64}")
    tr_addr_std(a, 9, 10)
    a("s_lshl_b32 s34, s3, 5\nv_xor_b32 v9, s34, v9")
    a("s_waitcnt vmcnt(0)\ns_barrier")
    for m in range(2):
        for kk in range(8):
            r = 96 + (m * 8 + kk) * 4
            a(f"ds_read_b64_tr_b16 v[{r}:{r+1}], v9 offset:{m*32768 + kk*4096}\nds_read_b64_tr_b16 v[{r+2}:{r+3}], v9 offset:{m*32768 + kk*4096 + 512}")
        a("s_waitcnt lgkmcnt(0)")
    for kk in range(8):
        for m in range(2):
            r = 96 + (m * 8 + kk) * 4
            c = "0" if kk == 0 else f"v[{12+4*m}:{15+4*m}]"
            a(f"v_mfma_f32_16x16x32_bf16 v[{12+4*m}:{15+4*m}], v[{r}:{r+3}], v[{64+4*kk}:{67+4*kk}], {c}")
    a("v_lshrrev_b32 v8, 4, v0\nv_and_b32 v7, 15, v0\nv_lshl_add_u32 v8, v8, 3, v7\nv_lshlrev_b32 v8, 4, v8")
    a("s_lshl_b32 s33, s2, 12\ns_lshl_b32 s34, s3, 9\ns_add_u32 s33, s33, s34")
    a("s_mov_b32 exec_lo, 0x00ff00ff\ns_mov_b32 exec_hi, 0x00ff00ff")
    a("buffer_store_dwordx4 v[12:15], v8, s[28:31], s33 offen\nbuffer_store_dwordx4 v[16:19], v8, s[28:31], s33 offen offset:2048")
    a("L_gu_end:\ns_endpgm")
    return kernel_desc("gu_kernel", 160)

def k_dn(a):
    kernel_begin(a, "dn_kernel")
    a("s_cmp_ge_u32 s2, 224\ns_cbranch_scc1 L_dn_end")
    a("s_load_dwordx2 s[4:5], s[0:1], 56\ns_load_dwordx2 s[8:9], s[0:1], 80")
    wave_id(a, 3)
    a("s_lshr_b32 s10, s2, 2\ns_and_b32 s11, s2, 3")
    a("s_waitcnt lgkmcnt(0)")
    srd(a, 12, 4, 3584 * 2048); srd_off(a, 24, 8, YP_OFF, 56 * 32768); srd_off(a, 28, 8, GU_OFF, 224 * 4096)
    a("v_lshrrev_b32 v2, 3, v0\nv_and_b32 v3, 7, v0\nv_and_b32 v4, 6, v2\nv_xor_b32 v3, v3, v4")
    a("v_lshlrev_b32 v2, 11, v2\nv_lshl_add_u32 v5, v3, 4, v2")
    a("s_lshl_b32 s33, s10, 17\ns_lshl_b32 s34, s11, 9\ns_add_u32 s33, s33, s34\ns_lshl_b32 s34, s3, 7\ns_add_u32 s33, s33, s34\ns_lshl_b32 s34, s3, 13")
    for n in range(8):
        dma(a, f"s_add_u32 m0, s34, {n*1024}", 5, 12, "s33")
        a(f"s_add_u32 s33, s33, {8*2048}")
    a("v_lshrrev_b32 v8, 4, v0\nv_and_b32 v7, 7, v0\nv_lshl_add_u32 v8, v8, 3, v7\nv_lshlrev_b32 v8, 4, v8\ns_lshl_b32 s33, s10, 14")
    for qq in range(4):
        for mb in range(8):
            r = 32 + (qq * 8 + mb) * 4
            a(f"buffer_load_dwordx4 v[{r}:{r+3}], v8, s[28:31], s33 offen offset:{mb*512}")
        a("s_add_u32 s33, s33, 4096")
    tr_addr_perm(a, 9, 10)
    a("v_add_u32 v9, s34, v9\ns_waitcnt vmcnt(0)")
    for i in range(32):
        a(f"v_add_f32 v{32+i}, v{32+i}, v{64+i}\nv_add_f32 v{96+i}, v{96+i}, v{128+i}\nv_add_f32 v{32+i}, v{32+i}, v{96+i}")
        bf16r(a, 32 + i, 32 + i)
    for i in range(16):
        a(f"v_mul_f32 v10, 0xbfb8aa3b, v{32+i}\nv_exp_f32 v10, v10\nv_add_f32 v10, 1.0, v10\nv_rcp_f32 v10, v10\nv_mul_f32 v{32+i}, v{32+i}, v10")
        bf16r(a, 32 + i, 32 + i)
        a(f"v_mul_f32 v{32+i}, v{32+i}, v{48+i}")
    for i in range(8): a(f"v_cvt_pk_bf16_f32 v{12+i}, v{32+2*i}, v{33+2*i}")
    for nb in range(4):
        a(f"v_xor_b32 v10, {nb*32}, v9")
        for kk in range(2):
            r = 64 + (nb * 2 + kk) * 4
            a(f"ds_read_b64_tr_b16 v[{r}:{r+1}], v10 offset:{kk*4096}\nds_read_b64_tr_b16 v[{r+2}:{r+3}], v10 offset:{kk*4096 + 2048}")
        a("s_waitcnt lgkmcnt(0)")
    for kk in range(2):
        for nb in range(4):
            r = 64 + (nb * 2 + kk) * 4
            c = "0" if kk == 0 else f"v[{32+4*nb}:{35+4*nb}]"
            a(f"v_mfma_f32_16x16x32_bf16 v[{32+4*nb}:{35+4*nb}], v[{r}:{r+3}], v[{12+4*kk}:{15+4*kk}], {c}")
    a("v_lshrrev_b32 v8, 4, v0\nv_and_b32 v7, 15, v0\nv_lshlrev_b32 v7, 12, v7\nv_lshl_add_u32 v8, v8, 4, v7")
    a("s_lshl_b32 s33, s10, 15\ns_lshl_b32 s34, s11, 10\ns_add_u32 s33, s33, s34\ns_lshl_b32 s34, s3, 8\ns_add_u32 s33, s33, s34")
    a("s_mov_b32 exec_lo, 0x00ff00ff\ns_mov_b32 exec_hi, 0x00ff00ff")
    for nb in range(4): a(f"buffer_store_dwordx4 v[{32+4*nb}:{35+4*nb}], v8, s[24:27], s33 offen offset:{nb*64}")
    a("L_dn_end:\ns_endpgm")
    return kernel_desc("dn_kernel", 160)

def map_8x4(a, si, sj, t):
    a(f"s_and_b32 s{si}, s2, 1\ns_lshl_b32 s{si}, s{si}, 3\ns_bfe_u32 s{t}, s2, 0x30003\ns_add_u32 s{si}, s{si}, s{t}")
    a(f"s_bfe_u32 s{sj}, s2, 0x20001\ns_lshl_b32 s{sj}, s{sj}, 2\ns_lshr_b32 s{t}, s2, 6\ns_add_u32 s{sj}, s{sj}, s{t}")
def map_4x8(a, si, sj, t):
    a(f"s_and_b32 s{si}, s2, 1\ns_lshl_b32 s{si}, s{si}, 3\ns_bfe_u32 s{t}, s2, 0x10001\ns_lshl_b32 s{t}, s{t}, 2\ns_add_u32 s{si}, s{si}, s{t}\ns_bfe_u32 s{t}, s2, 0x20003\ns_add_u32 s{si}, s{si}, s{t}")
    a(f"s_bfe_u32 s{sj}, s2, 0x10002\ns_lshl_b32 s{sj}, s{sj}, 3\ns_lshr_b32 s{t}, s2, 5\ns_add_u32 s{sj}, s{sj}, s{t}")

SLOT = 43008
def k_qkv(a):
    kernel_begin(a, "qkv_kernel")
    a("s_cmp_ge_u32 s2, 256\ns_cbranch_scc1 L_q_end")
    a("s_load_dwordx2 s[4:5], s[0:1], 8\ns_load_dwordx2 s[8:9], s[0:1], 80")
    wave_id(a, 3)
    map_8x4(a, 10, 11, 12)
    a("s_waitcnt lgkmcnt(0)")
    srd_off(a, 16, 8, XN_OFF, 4 << 20); srd(a, 20, 4, 1024 * 6144); srd_off(a, 24, 8, O_OFF, 4 << 20)
    a("s_cmp_lt_u32 s3, 4\ns_cbranch_scc1 L_q_cons")
    a("s_sub_u32 s3, s3, 4")
    a("v_lshrrev_b32 v2, 3, v0\nv_and_b32 v3, 7, v0")
    a("s_lshl_b32 s14, s10, 7\ns_lshl_b32 s15, s3, 3\ns_add_u32 s14, s14, s15\ns_sub_u32 s14, s14, 16")
    a("v_add_u32 v4, s14, v2\nv_bfe_u32 v5, v4, 1, 3\nv_xor_b32 v5, v5, v3\nv_lshlrev_b32 v4, 11, v4\nv_lshl_add_u32 v10, v5, 4, v4")
    for n in range(1, 9): a(f"v_add_u32 v{10+n}, {n*16*2048}, v10")
    a("v_add_u32 v4, s15, v2\nv_and_b32 v5, 2, v2\nv_xor_b32 v5, v5, v3\ns_lshl_b32 s14, s3, 2\nv_xor_b32 v5, s14, v5")
    a("v_mul_u32_u24 v4, 6144, v4\nv_lshl_add_u32 v4, v5, 4, v4\ns_lshl_b32 s15, s11, 7\nv_add_u32 v30, s15, v4")
    wp = [(seg, n) for seg in range(3) for n in range(4)]
    for idx, (seg, n) in enumerate(wp):
        if idx: a(f"v_add_u32 v{30+idx}, {seg*2048 + n*16*6144}, v30")
    a("s_lshl_b32 s28, s3, 10\ns_mov_b32 s30, 0\ns_mov_b32 s31, 0\ns_add_u32 s29, s28, %d" % (3 * SLOT))
    def issue():
        for n in range(9): dma(a, f"s_add_u32 m0, s28, {n*2048}", 10 + n, 16, "s30")
        for idx, (seg, n) in enumerate(wp): dma(a, f"s_add_u32 m0, s28, {18432 + seg*8192 + n*2048}", 30 + idx, 20, "s31")
        a(f"s_add_u32 s30, s30, 128\ns_add_u32 s31, s31, {64*6144}\ns_add_u32 s28, s28, {SLOT}\ns_cmp_eq_u32 s28, s29\ns_cselect_b32 s32, {3*SLOT}, 0\ns_sub_u32 s28, s28, s32")
    a("s_mov_b32 s33, 0\nL_q_ld:")
    issue()
    a("s_add_u32 s33, s33, 1\ns_cmp_lt_u32 s33, 3\ns_cbranch_scc1 L_q_ld")
    a("s_cmp_gt_u32 s33, 3\ns_cbranch_scc1 L_q_ld2\ns_waitcnt vmcnt(42)\ns_barrier\nL_q_ld2:")
    a("s_waitcnt vmcnt(21)\ns_barrier\ns_cmp_lt_u32 s33, 16\ns_cbranch_scc1 L_q_ld")
    a("s_waitcnt vmcnt(0)\ns_barrier\ns_endpgm")
    a("L_q_cons:")
    a("s_and_b32 s12, s3, 1\ns_lshr_b32 s13, s3, 1")
    a("v_and_b32 v2, 15, v0\nv_lshrrev_b32 v3, 4, v0\nv_lshrrev_b32 v4, 1, v2\nv_xor_b32 v4, v4, v3\nv_lshlrev_b32 v4, 4, v4\nv_lshl_add_u32 v4, v2, 7, v4")
    a("s_lshl_b32 s14, s13, 13\nv_add_u32 v4, s14, v4\nv_xor_b32 v5, 64, v4")
    tr_addr_std(a, 6, 7)
    a("s_lshl_b32 s14, s12, 6\nv_xor_b32 v6, s14, v6\nv_add_u32 v6, 18432, v6\nv_xor_b32 v7, 32, v6")
    ACC = 16
    def accQ(b, c): return ACC + ((b - 1) * 2 + c) * 4
    def accK(b, c): return ACC + 32 + (b * 2 + c) * 4
    def accV(b, c): return ACC + 72 + (b * 2 + c) * 4
    FR = [128, 172]
    def fx(s, b): return FR[s] + b * 4
    def fw(s, seg, c): return FR[s] + 20 + (seg * 2 + c) * 4
    for i in range(112): a(f"v_mov_b32 v{ACC+i}, 0")
    def reads(s, kk):
        L = []
        for seg in (1, 2, 0):
            for c in range(2):
                r = fw(s, seg, c); o = seg * 8192 + kk * 4096
                L.append(f"ds_read_b64_tr_b16 v[{r}:{r+1}], v{10+c} offset:{o}")
                L.append(f"ds_read_b64_tr_b16 v[{r+2}:{r+3}], v{10+c} offset:{o+512}")
        X = [f"ds_read_b128 v[{fx(s,b)}:{fx(s,b)+3}], v{8+kk} offset:{b*2048}" for b in range(5)]
        return X[:1] + L[:4] + X[1:] + L[4:]
    def mfmas(s):
        L = []
        R = lambda r: f"v[{r}:{r+3}]"
        for b in range(5):
            for c in range(2): L.append(f"v_mfma_f32_16x16x32_bf16 {R(accK(b,c))}, {R(fw(s,1,c))}, {R(fx(s,b))}, {R(accK(b,c))}")
        for b in range(5):
            for c in range(2): L.append(f"v_mfma_f32_16x16x32_bf16 {R(accV(b,c))}, {R(fx(s,b))}, {R(fw(s,2,c))}, {R(accV(b,c))}")
        for b in range(1, 5):
            for c in range(2): L.append(f"v_mfma_f32_16x16x32_bf16 {R(accQ(b,c))}, {R(fw(s,0,c))}, {R(fx(s,b))}, {R(accQ(b,c))}")
        return L
    def interleave(M, R):
        for i, m in enumerate(M):
            a(m)
            if i < len(R): a(R[i])
    def setslot():
        for i in range(4): a(f"v_add_u32 v{8+i}, s28, v{4+i}")
    a("s_mov_b32 s28, 0\ns_mov_b32 s33, 0")
    setslot()
    a("s_barrier")
    for r in reads(0, 0): a(r)
    a("L_q_loop:\ns_waitcnt lgkmcnt(0)")
    interleave(mfmas(0), reads(1, 1))
    a(f"s_add_u32 s28, s28, {SLOT}\ns_cmp_eq_u32 s28, {3*SLOT}\ns_cselect_b32 s28, 0, s28")
    a("s_add_u32 s33, s33, 1\ns_cmp_eq_u32 s33, 16\ns_waitcnt lgkmcnt(0)\ns_cbranch_scc1 L_q_last")
    setslot()
    a("s_barrier")
    interleave(mfmas(1), reads(0, 0))
    a("s_branch L_q_loop\nL_q_last:")
    interleave(mfmas(1), [])
    QF, KF, VP = 128, 144, 164
    def pk(d, s): a(f"v_cvt_pk_bf16_f32 v{d}, v{s}, v{s+1}")
    for b in range(5):
        for c in range(2):
            pk(KF + b * 4 + c * 2, accK(b, c)); pk(KF + b * 4 + c * 2 + 1, accK(b, c) + 2)
    for b in range(5):
        for c in range(2):
            pk(VP + c * 10 + b * 2, accV(b, c)); pk(VP + c * 10 + b * 2 + 1, accV(b, c) + 2)
    for b in range(1, 5):
        for c in range(2):
            pk(QF + (b - 1) * 4 + c * 2, accQ(b, c)); pk(QF + (b - 1) * 4 + c * 2 + 1, accQ(b, c) + 2)
    a("v_and_b32 v2, 15, v0\nv_lshrrev_b32 v3, 4, v0\nv_and_b32 v4, 1, v0\nv_lshl_add_u32 v3, v3, 2, v4\nv_cmp_eq_u32 s[40:41], 1, v4\nv_cmp_le_u32 s[42:43], v3, v2\nv_add_u32 v3, 2, v3\nv_cmp_le_u32 s[44:45], v3, v2")
    a("v_lshlrev_b32 v4, 4, v4")
    R = lambda r: f"v[{r}:{r+3}]"
    for b in range(1, 5):
        s = 16 + (b - 1) * 8
        a(f"v_mfma_f32_16x16x32_bf16 {R(s)}, {R(KF+b*4)}, {R(QF+(b-1)*4)}, 0")
        a(f"v_mfma_f32_16x16x32_bf16 {R(s+4)}, {R(KF+(b-1)*4)}, {R(QF+(b-1)*4)}, 0")
    a("s_or_b32 s46, s10, s13\ns_cmp_eq_u32 s46, 0\ns_cselect_b64 s[46:47], -1, 0\nv_mov_b32 v5, 0xce6e6b28")
    a("s_lshl_b32 s14, s10, 3\ns_lshl_b32 s15, s13, 2\ns_add_u32 s14, s14, s15\ns_lshl_b32 s14, s14, 5\ns_lshl_b32 s15, s11, 1\ns_add_u32 s14, s14, s15\ns_add_u32 s14, s14, s12\ns_lshl_b32 s14, s14, 10\nv_lshlrev_b32 v6, 4, v0")
    for b in range(1, 5):
        s = 16 + (b - 1) * 8; t = 48 + (b - 1) * 8; P = 80 + (b - 1) * 4; O = 96 + (b - 1) * 8
        a(f"v_cndmask_b32 v{t}, v{s}, v{s+1}, s[40:41]\nv_cndmask_b32 v{t+1}, v{s+2}, v{s+3}, s[40:41]")
        a(f"v_cndmask_b32 v{t+2}, v{s+4}, v{s+5}, s[40:41]\nv_cndmask_b32 v{t+3}, v{s+6}, v{s+7}, s[40:41]")
        a(f"v_cndmask_b32 v{t}, v{t+2}, v{t}, s[42:43]\nv_cndmask_b32 v{t+1}, v{t+3}, v{t+1}, s[44:45]")
        a(f"v_cvt_pk_bf16_f32 v{t+1}, v{t}, v{t+1}"); unpack(a, t, t + 1)
        a(f"v_mul_f32 v{t}, 0x3e3504f3, v{t}\nv_mul_f32 v{t+1}, 0x3e3504f3, v{t+1}\nv_cvt_pk_bf16_f32 v{t+1}, v{t}, v{t+1}"); unpack(a, t, t + 1)
        if b == 1:
            a("s_andn2_b64 s[48:49], s[46:47], s[42:43]\ns_andn2_b64 s[50:51], s[46:47], s[44:45]")
            a(f"v_cndmask_b32 v{t}, v{t}, v5, s[48:49]\nv_cndmask_b32 v{t+1}, v{t+1}, v5, s[50:51]")
        a(f"v_max_f32 v{t+2}, v{t}, v{t+1}"); xrow_reduce(a, "v_max_f32", t + 2, t + 3)
        a(f"v_sub_f32 v{t}, v{t}, v{t+2}\nv_sub_f32 v{t+1}, v{t+1}, v{t+2}\nv_mul_f32 v{t}, 0x3fb8aa3b, v{t}\nv_mul_f32 v{t+1}, 0x3fb8aa3b, v{t+1}\nv_exp_f32 v{t}, v{t}\nv_exp_f32 v{t+1}, v{t+1}")
        a(f"v_add_f32 v{t+2}, v{t}, v{t+1}"); xrow_reduce(a, "v_add_f32", t + 2, t + 3)
        a(f"v_rcp_f32 v{t+2}, v{t+2}\nv_mul_f32 v{t}, v{t}, v{t+2}\nv_mul_f32 v{t+1}, v{t+1}, v{t+2}\nv_cvt_pk_bf16_f32 v{t+1}, v{t}, v{t+1}")
        a(f"v_and_b32 v{t}, 0xffff, v{t+1}\nv_lshrrev_b32 v{t+1}, 16, v{t+1}\nv_lshlrev_b32 v{t}, v4, v{t}\nv_lshlrev_b32 v{t+1}, v4, v{t+1}")
        a(f"v_cndmask_b32 v{P}, v{t}, 0, s[42:43]\nv_cndmask_b32 v{P+1}, v{t+1}, 0, s[44:45]\nv_cndmask_b32 v{P+2}, 0, v{t}, s[42:43]\nv_cndmask_b32 v{P+3}, 0, v{t+1}, s[44:45]")
        for c in range(2):
            a(f"v_mfma_f32_16x16x32_bf16 {R(O+4*c)}, {R(VP+c*10+(b-1)*2)}, {R(P)}, 0")
    for b in range(1, 5):
        O = 96 + (b - 1) * 8; d = 16 + (b - 1) * 4
        for i in range(4): pk(d + i, O + 2 * i)
        a(f"buffer_store_dwordx4 {R(d)}, v6, s[24:27], s14 offen\ns_add_u32 s14, s14, 32768")
    a("L_q_end:\ns_endpgm")
    return kernel_desc("qkv_kernel", 216)

def k_out(a):
    kernel_begin(a, "out_kernel")
    a("s_cmp_ge_u32 s2, 256\ns_cbranch_scc1 L_o_end")
    a("s_load_dwordx2 s[4:5], s[0:1], 16\ns_load_dwordx2 s[6:7], s[0:1], 0\ns_load_dwordx2 s[8:9], s[0:1], 80\ns_load_dwordx2 s[12:13], s[0:1], 64")
    wave_id(a, 3)
    map_4x8(a, 10, 11, 14)
    a("s_waitcnt lgkmcnt(0)")
    a(f"s_add_u32 s14, s8, {SEL_OFF}\ns_addc_u32 s15, s9, 0\ns_load_dwordx8 s[56:63], s[14:15], 0")
    srd(a, 16, 4, 2 << 20); srd_off(a, 20, 8, O_OFF, 4 << 20); srd(a, 24, 6, 4 << 20); srd_off(a, 28, 8, XN_OFF, 4 << 20)
    srd(a, 32, 12, 4 << 20); srd_off(a, 36, 8, YP_OFF, 56 * 32768)
    a("v_lshrrev_b32 v2, 3, v0\nv_and_b32 v3, 7, v0\nv_and_b32 v4, 6, v2\nv_xor_b32 v3, v3, v4\nv_lshlrev_b32 v2, 11, v2\nv_lshl_add_u32 v5, v3, 4, v2")
    a("s_lshl_b32 s40, s3, 14\ns_lshl_b32 s41, s11, 7\ns_add_u32 s40, s40, s41\ns_lshl_b32 s41, s3, 10")
    a("v_lshlrev_b32 v6, 4, v0\ns_lshl_b32 s42, s10, 3\ns_lshl_b32 s43, s3, 1\ns_add_u32 s42, s42, s43\ns_lshl_b32 s42, s42, 15\ns_add_u32 s43, s42, 32768")
    for n in range(32):
        dma(a, "s_mov_b32 m0, s41", 5, 16, "s40")
        a("s_add_u32 s40, s40, 65536\ns_add_u32 s41, s41, 4096")
    tr_addr_perm(a, 8, 12)
    for nb in range(1, 4): a(f"v_xor_b32 v{8+nb}, {nb*32}, v8")
    for i in range(32): a(f"v_mov_b32 v{16+i}, 0")
    R = lambda r: f"v[{r}:{r+3}]"
    a("s_mov_b32 s44, 0\nL_o_loop:")
    for hh in range(8):
        o = (hh & 3) * 1024
        a(f"buffer_load_dwordx4 {R(64+hh*8)}, v6, s[20:23], s42 offen offset:{o}\nbuffer_load_dwordx4 {R(68+hh*8)}, v6, s[20:23], s43 offen offset:{o}")
        if hh & 3 == 3: a("s_add_u32 s42, s42, 4096\ns_add_u32 s43, s43, 4096")
    a("s_waitcnt vmcnt(0)\ns_barrier")
    for hh in range(8):
        for nb in range(4):
            r = 48 + nb * 4
            a(f"ds_read_b64_tr_b16 v[{r}:{r+1}], v{8+nb} offset:{hh*4096}\nds_read_b64_tr_b16 v[{r+2}:{r+3}], v{8+nb} offset:{hh*4096+2048}")
        a("s_waitcnt lgkmcnt(0)")
        for nb in range(4):
            for tb in range(2):
                d = 16 + (tb * 4 + nb) * 4
                a(f"v_mfma_f32_16x16x32_bf16 {R(d)}, {R(48+nb*4)}, {R(64+hh*8+tb*4)}, {R(d)}")
    for nb in range(4): a(f"v_add_u32 v{8+nb}, 32768, v{8+nb}")
    a("s_add_u32 s44, s44, 1\ns_cmp_lt_u32 s44, 4\ns_cbranch_scc1 L_o_loop")
    a("v_and_b32 v2, 15, v0\nv_bfe_u32 v3, v0, 4, 1\nv_lshrrev_b32 v4, 5, v0\nv_lshlrev_b32 v4, 4, v4\nv_lshl_add_u32 v4, v3, 5, v4\nv_lshl_add_u32 v7, v2, 11, v4")
    a("s_lshl_b32 s42, s10, 2\ns_add_u32 s42, s42, s3\ns_lshl_b32 s43, s42, 16\ns_lshl_b32 s44, s11, 7\ns_add_u32 s43, s43, s44\ns_add_u32 s44, s43, 32768")
    for tb in range(2):
        for p in range(2):
            u = (tb * 2 + p) * 4
            a(f"buffer_load_dwordx4 {R(48+u)}, v7, s[24:27], s{43+tb} offen offset:{p*64}\nbuffer_load_dwordx4 {R(64+u)}, v7, s[28:31], s{43+tb} offen offset:{p*64}")
    for tb in range(2):
        for p in range(2):
            d = 16 + (tb * 4 + p * 2) * 4
            for i in range(4): a(f"v_permlane16_swap_b32 v{d+i}, v{d+4+i}")
    a("s_waitcnt vmcnt(0) lgkmcnt(0)")
    for i in range(16): unpack(a, 80 + 2 * i, 64 + i)
    a("v_and_b32 v12, 15, v0\nv_lshlrev_b32 v12, 4, v12\nv_lshrrev_b32 v13, 4, v0\nv_lshl_add_u32 v13, v13, 15, v12")
    a("s_lshl_b32 s45, s3, 8\nv_add_u32 v12, s45, v12\nv_lshl_add_u32 v14, v4, 1, s45")
    a("s_barrier")
    for s in range(8):
        lab = a.label("nosel"); l1 = a.label("tb1"); l2 = a.label("tbe")
        a(f"s_and_b32 s46, s{56+s}, 0x7ff\ns_sub_u32 s46, 2047, s46\ns_lshr_b32 s47, s46, 5\ns_cmp_lg_u32 s47, s42\ns_cbranch_scc1 {lab}")
        a(f"s_lshl_b32 s47, s11, 8\ns_add_u32 s47, s47, {s*4096}")
        for n in range(14):
            a(f"buffer_load_dwordx4 {R(112+4*n)}, v13, s[36:39], s47 offen\ns_add_u32 s47, s47, {4*32768}")
        a(f"s_and_b32 s47, s{56+s}, 0xffff0000\ns_ashr_i32 s48, s47, 31\ns_not_b32 s48, s48\ns_or_b32 s48, s48, 0x80000000\ns_xor_b32 s47, s47, s48\ns_and_b32 s47, s47, 0xffff0000")
        a("v_mov_b32 v15, s47\nv_mul_f32 v15, 0xbfb8aa3b, v15\nv_exp_f32 v15, v15\nv_add_f32 v15, 1.0, v15\nv_rcp_f32 v15, v15"); bf16r(a, 15, 15)
        a("s_waitcnt vmcnt(0)")
        for n in range(1, 14):
            for i in range(4): a(f"v_add_f32 v{112+i}, v{112+i}, v{112+4*n+i}")
        for i in range(4):
            xrow_reduce(a, "v_add_f32", 112 + i, 116); bf16r(a, 112 + i, 112 + i)
            a(f"v_mul_f32 v{112+i}, v{112+i}, v15"); bf16r(a, 112 + i, 112 + i)
        a("ds_write_b128 v12, v[112:115]\ns_waitcnt lgkmcnt(0)")
        for p in range(2): a(f"ds_read_b128 {R(116+8*p)}, v14 offset:{p*128}\nds_read_b128 {R(120+8*p)}, v14 offset:{p*128+16}")
        a("s_and_b32 s47, s46, 15\nv_cmp_eq_u32 vcc, s47, v2\ns_waitcnt lgkmcnt(0)\ns_and_saveexec_b64 s[50:51], vcc")
        a(f"s_bitcmp1_b32 s46, 4\ns_cbranch_scc1 {l1}")
        for tb in range(2):
            for i in range(16):
                a(f"v_add_f32 v{80+tb*16+i}, v{80+tb*16+i}, v{116+i}"); bf16r(a, 80 + tb * 16 + i, 80 + tb * 16 + i)
            if tb == 0: a(f"s_branch {l2}\n{l1}:")
        a(f"{l2}:\ns_mov_b64 exec, s[50:51]\n{lab}:")
    for i in range(16):
        d = 16 + 2 * i
        a(f"v_cvt_pk_bf16_f32 v{d+1}, v{d}, v{d+1}"); unpack(a, d, d + 1); unpack(a, 112, 48 + i)
        a(f"v_add_f32 v{d}, v{d}, v112\nv_add_f32 v{d+1}, v{d+1}, v113\nv_cvt_pk_bf16_f32 v{d+1}, v{d}, v{d+1}"); unpack(a, d, d + 1)
        a(f"v_add_f32 v{d}, v{d}, v{80+2*i}\nv_add_f32 v{d+1}, v{d+1}, v{81+2*i}\nv_cvt_pk_bf16_f32 v{48+i}, v{d}, v{d+1}")
    for tb in range(2):
        for p in range(2):
            a(f"buffer_store_dwordx4 {R(48+(tb*2+p)*4)}, v7, s[32:35], s{43+tb} offen offset:{p*64}")
    a("L_o_end:\ns_endpgm")
    return kernel_desc("out_kernel", 168)

def k_empty(a):
    kernel_begin(a, "empty_kernel")
    a("s_endpgm")
    return kernel_desc("empty_kernel", 8)

def build(extra_empty=0, probe=None):
    a = Asm()
    descs = [k_ln(a), k_gu(a), k_dn(a), k_qkv(a), k_out(a)]
    launches = [("ln_kernel", 256, 512, 0), ("gu_kernel", 224, 256, 65536), ("dn_kernel", 224, 256, 32768), ("qkv_kernel", 256, 384, 3 * SLOT), ("out_kernel", 256, 256, 131072)]
    if extra_empty:
        descs.append(k_empty(a)); launches += [("empty_kernel", 256, 256, 0)] * extra_empty
    if probe:
        d, l = probe(a); descs.append(d); launches = [l] + launches
    a.l, n = hazard.fix(a.l)
    return file_text(launches, a.text(), descs)

if __name__ == "__main__":
    open(sys.argv[1] if len(sys.argv) > 1 else "base.s", "w").write(build())
```

```python
import re
REG = re.compile(r'^(-|\|)?(abs\()?([vas])(\d+)\)?\|?$')
RNG = re.compile(r'^(-|\|)?(abs\()?([vas])\[(\d+):(\d+)\]\)?\|?$')
TRANS = ("v_exp_f32", "v_log_f32", "v_rcp_f32", "v_rsq_f32", "v_sqrt_f32", "v_sin_f32", "v_cos_f32", "v_rcp_iflag_f32")

def regs(tok):
    tok = tok.strip()
    m = REG.match(tok)
    if m: return {(m.group(3), int(m.group(4)))}
    m = RNG.match(tok)
    if m: return {(m.group(3), i) for i in range(int(m.group(4)), int(m.group(5)) + 1)}
    if tok in ("vcc", "vcc_lo", "vcc_hi"): return {("s", "vcc")}
    if tok in ("exec", "exec_lo", "exec_hi"): return {("s", "exec")}
    if tok == "m0": return {("s", "m0")}
    return set()

class I:
    def __init__(self, text):
        self.text = text
        t = text.split(";")[0].split("//")[0].strip()
        self.label = t[:-1] if t.endswith(":") else None
        self.directive = t.startswith(".") and not self.label
        self.mn = ""; self.ops = []; self.mods = ""
        self.w = set(); self.r = set()
        self.kind = "none"
        if self.label or self.directive or not t: return
        p = t.split(None, 1)
        self.mn = mn = re.sub(r"_e(32|64)$", "", p[0])
        rest = p[1] if len(p) > 1 else ""
        ops = []; cur = ""; d = 0
        for ch in rest:
            if ch in "[(": d += 1
            if ch in "])": d -= 1
            if ch == "," and d == 0: ops.append(cur.strip()); cur = ""
            else: cur += ch
        if cur.strip(): ops.append(cur.strip())
        if ops:
            last = ops[-1].split(None, 1)
            ops[-1] = last[0]; self.mods = last[1] if len(last) > 1 else ""
        self.ops = ops
        R = [regs(o) for o in ops]
        U = lambda xs: set().union(*xs) if xs else set()
        if mn.startswith("v_pk_") and re.search(r"op_sel:\[[01],1", self.mods): raise Exception("op_sel on src1 of a packed op is broken beside another wave's MFMA: " + text)
        self.dpp = "_dpp" in mn or "row_" in self.mods or "quad_perm" in self.mods
        self.sdwa = "_sdwa" in mn
        base = mn.replace("_dpp", "").replace("_sdwa", "")
        if base.startswith("v_mfma"):
            self.kind = "mfma"; self.w = R[0]; self.a = R[1]; self.b = R[2]; self.c = R[3]; self.r = U(R[1:])
            self.passes = 8 if "32x32" in base else 4
        elif base.startswith("v_"):
            self.kind = "valu"
            self.trans = base in TRANS
            if base.startswith("v_permlane") and "swap" in base:
                self.w = U(R[:2]); self.r = U(R[:2]); self.perm = True
            elif base.startswith("v_cmp"):
                self.w = R[0]; self.r = U(R[1:])
                if base.startswith("v_cmpx"): raise Exception("no cmpx please")
            elif re.match(r"v_(add|sub|subrev|addc|subb|subbrev)_co_", base) or base.startswith("v_div_scale") or base.startswith("v_mad_u64"):
                self.w = U(R[:2]); self.r = U(R[2:])
            elif base == "v_nop": pass
            else:
                self.w = R[0]; self.r = U(R[1:])
                if base.startswith(("v_fmac", "v_dot2c", "v_pk_fmac", "v_writelane")) or self.dpp or self.sdwa: self.r |= R[0]
            self.dot = base if base.startswith("v_dot") else None
            self.dotc = (R[0] if base.startswith("v_dot2c") else R[3]) if self.dot else set()
            self.dotab = U(R[1:3]) if self.dot else set()
            self.rdlane = base.startswith(("v_readlane", "v_readfirstlane"))
            self.lanesel = R[2] if base.startswith(("v_readlane", "v_writelane")) and len(R) > 2 else set()
        elif base.startswith("ds_"):
            self.kind = "ds"
            if base.startswith(("ds_read", "ds_bpermute", "ds_permute", "ds_swizzle")) or "_rtn" in base:
                self.w = R[0]; self.r = U(R[1:])
            else: self.r = U(R)
        elif base.startswith(("buffer_", "global_")):
            self.kind = "vmem"
            self.ldsdma = (" lds" in " " + self.mods) or "load_lds" in base
            self.widestore = set()
            if base in ("buffer_wbl2", "buffer_inv"): pass
            elif self.ldsdma: self.r = U(R) | {("s", "m0")}
            elif "_load" in base: self.w = R[0]; self.r = U(R[1:])
            elif "atomic" in base and "sc0" in self.mods:
                self.w = R[0]; self.r = U(R) if base.startswith("buffer_") else U(R[1:])
            else:
                self.r = U(R)
                if base.endswith(("x3", "x4")):
                    self.widestore = R[0] if base.startswith("buffer_") else R[1]
        elif base.startswith("s_"):
            self.kind = "salu"
            if base.startswith(("s_cmp", "s_cbranch", "s_branch", "s_waitcnt", "s_barrier", "s_nop", "s_endpgm", "s_sleep", "s_setprio", "s_bitcmp")):
                self.r = U(R)
            else:
                self.w = R[0] if R else set(); self.r = U(R[1:])
                if "saveexec" in base: self.w = self.w | {("s", "exec")}
        else:
            raise Exception("unknown instr " + text)
    def states(self):
        if self.mn == "s_nop": return int(self.ops[0], 0) + 1
        return 1 if self.kind != "none" else 0

def need(p, c):
    n = 0
    V = lambda s: {x for x in s if x[0] in "va"}
    S = lambda s: {x for x in s if x[0] == "s"}
    if p.kind == "valu":
        pv = V(p.w); ps = S(p.w)
        if c.kind == "valu":
            if c.dpp and pv & c.r: n = max(n, 2)
            if getattr(c, "perm", False) and pv & c.r: n = max(n, 2)
            if c.rdlane and pv & c.r: n = max(n, 1)
            if p.trans and not c.trans and pv & c.r: n = max(n, 1)
            if (p.sdwa or ("op_sel" in p.mods and not p.mn.startswith("v_pk_"))) and pv & (c.r | c.w): n = max(n, 1)
            if ps & c.r: n = max(n, 2)
            if ps & c.lanesel: n = max(n, 4)
        if p.dot:
            if c.kind == "valu" and c.dot == p.dot:
                if pv & c.dotab: n = max(n, 3)
            elif pv & (c.r | c.w): n = max(n, 3)
        if c.kind == "mfma" and pv & c.r: n = max(n, 2)
        if c.kind == "vmem" and ps & c.r: n = max(n, 5)
    if p.kind == "mfma":
        big = 8 if p.passes == 4 else 12
        if c.kind == "mfma":
            if p.w & (c.a | c.b): n = max(n, big)
            if p.w & c.c and not (p.w == c.c and p.passes == c.passes): n = max(n, big - 2)
            if p.w & c.w and not (p.w & c.c): n = max(n, big)
        elif c.kind in ("valu", "ds", "vmem"):
            if p.w & (c.r | c.w): n = max(n, big)
            if c.kind == "valu" and V(p.c) & c.w: n = max(n, 3 if p.passes == 4 else 7)
    if p.kind == "salu" and ("s", "m0") in p.w and c.kind == "vmem" and c.ldsdma: n = max(n, 1)
    if p.kind == "vmem" and p.widestore and p.widestore & c.w: n = max(n, 2)
    return n

MAXW = 12
def fix(lines, insert=True, verbose=False):
    ins = [I(l) for l in lines]
    total = 0
    start = 0
    while True:
        lab = {x.label: i for i, x in enumerate(ins) if x.label}
        preds = [[] for _ in ins]
        for i, x in enumerate(ins):
            if x.mn in ("s_branch",) or x.mn.startswith("s_cbranch"):
                preds[lab[x.ops[0]]].append(i)
            if x.mn not in ("s_branch", "s_endpgm") and i + 1 < len(ins):
                preds[i + 1].append(i)
        todo = None
        for i in range(start, len(ins)):
            c = ins[i]
            if c.kind in ("none", "salu"): continue
            worst = 0; stack = [(j, 0) for j in preds[i]]; seen = {}
            while stack:
                j, d = stack.pop()
                if seen.get(j, 99) <= d: continue
                seen[j] = d
                p = ins[j]
                if p.kind != "none":
                    k = need(p, c) - d
                    if k > worst: worst = k; who = p
                d2 = d + p.states()
                if d2 < MAXW: stack += [(q, d2) for q in preds[j]]
            if worst > 0:
                todo = (i, worst, who); break
        if not todo: break
        i, k, who = todo
        if verbose or not insert: print(f"hazard: '{who.text.strip()}' -> '{ins[i].text.strip()}' needs {k} more")
        if not insert: raise Exception("hazard")
        ins.insert(i, I(f"    s_nop {k-1}")); total += 1
        start = i
    return [x.text for x in ins], total
```

```python
from gen1 import *
def probe_bx(nt=""):
    def p(a):
        kernel_begin(a, "probe_kernel")
        a("s_cmp_ge_u32 s2, 1\ns_cbranch_scc1 L_p_end")
        a("s_load_dwordx2 s[4:5], s[0:1], 24\ns_load_dwordx2 s[6:7], s[0:1], 72\ns_memrealtime s[40:41]\ns_waitcnt lgkmcnt(0)")
        srd(a, 12, 4, 4 << 20)
        a("v_lshlrev_b32 v1, 4, v0\ns_mov_b32 s20, 0\nL_p_loop:")
        for i in range(16): a(f"buffer_load_dwordx4 v[{4+4*i}:{7+4*i}], v1, s[12:15], s20 offen {nt}\ns_add_u32 s20, s20, 1024")
        a("s_waitcnt vmcnt(0)\ns_cmp_lt_u32 s20, %d\ns_cbranch_scc1 L_p_loop" % (1 << 20))
        a("s_memrealtime s[42:43]\ns_waitcnt lgkmcnt(0)\ns_sub_u32 s42, s42, s40\nv_mov_b32 v2, s42\nv_mov_b32 v1, 0\nglobal_store_dword v1, v2, s[6:7]")
        a("L_p_end:\ns_endpgm")
        return kernel_desc("probe_kernel", 72), ("probe_kernel", 1, 64, 0)
    return p
open("v_base.s", "w").write(build())
open("v_e5.s", "w").write(build(extra_empty=5))
open("v_e10.s", "w").write(build(extra_empty=10))
open("v_probe.s", "w").write(build(probe=probe_bx()))
```

```python
import sys
from asmgen import *
import hazard

KNAME = NAME + "_kernel"
W_EPOCH = 0
W_KEYS = 0x10000
W_STATS = 0x20000
W_OFLAG = 0x30000
W_GU = 0x100000
W_YP = 0x200000
W_O = 0x800000
W_SIZE = 0xC00000
L_ONES = 0
L_FLAG = 128
FL_L, FL_C, FL_F, FL_SEL, FL_X, FL_H, FL_U = 0, 4, 8, 10, 12, 16, 18
L_M = 256
L_RS = 832
L_SEL = 1408
L_RING = 2048
SLOT = 43008
L_STG = 131072
L_EX = 133120
EXH = 6656
L_HX = L_EX + 2 * EXH
L_UPD = L_HX + 2048
LDS_BYTES = 163840
L_DUMMY = 1536
DPPF = "row_mask:0xf bank_mask:0xf"
R4 = lambda r: f"v[{r}:{r+3}]"
R2 = lambda r: f"v[{r}:{r+1}]"
MF = "v_mfma_f32_16x16x32_bf16"
SX, SW, SA, SB = 32, 36, 40, 44
SR = lambda s: f"s[{s}:{s+3}]"

def row_reduce(a, op, v):
    for m in ("quad_perm:[1,0,3,2]", "quad_perm:[2,3,0,1]", "row_half_mirror", "row_mirror"):
        a(f"{op}_dpp v{v}, v{v}, v{v} {m} {DPPF}")
def xrow_reduce(a, op, v, t):
    a(f"v_mov_b32 v{t}, v{v}\nv_permlane16_swap_b32 v{t}, v{v}\n{op} v{v}, v{v}, v{t}")
    a(f"v_mov_b32 v{t}, v{v}\nv_permlane32_swap_b32 v{t}, v{v}\n{op} v{v}, v{v}, v{t}")
def bf16r(a, d, s):
    a(f"v_cvt_pk_bf16_f32 v{d}, v{s}, v{s}\nv_lshlrev_b32 v{d}, 16, v{d}")
def unpack(a, d, s):
    a(f"v_lshlrev_b32 v{d}, 16, v{s}\nv_and_b32 v{d+1}, 0xffff0000, v{s}")
def bc(r):
    return R2(r & ~1), r & 1
def tr_addr_std(a, d, t):
    a(f"v_lshrrev_b32 v{d}, 4, v0\nv_bfe_u32 v{t}, v0, 2, 2\nv_lshl_add_u32 v{d}, v{d}, 3, v{t}\nv_lshlrev_b32 v{d}, 7, v{d}")
    a(f"v_and_b32 v{t}, 3, v0\nv_lshl_add_u32 v{d}, v{t}, 3, v{d}")
    a(f"v_bfe_u32 v{t}, v0, 3, 2\nv_lshl_add_u32 v{d}, v{t}, 5, v{d}")
def tr_addr_perm(a, d, t):
    a(f"v_lshrrev_b32 v{d}, 2, v0\nv_lshlrev_b32 v{d}, 7, v{d}")
    a(f"v_and_b32 v{t}, 3, v0\nv_lshl_add_u32 v{d}, v{t}, 3, v{d}")
    a(f"v_bfe_u32 v{t}, v0, 3, 2\nv_lshl_add_u32 v{d}, v{t}, 5, v{d}")
def dma(a, m0expr, vaddr, srdr, soff, flags=""):
    a(f"{m0expr}\ns_nop 0\nbuffer_load_dwordx4 v{vaddr}, {SR(srdr)}, {soff} offen {flags} lds")
def sig_addr(a, d, sidx):
    a(f"v_lshlrev_b32 v{d}, 2, v0\nv_add_u32 v{d}, {L_DUMMY}, v{d}\nv_writelane_b32 v{d}, {sidx}, 0")
def bound(a):
    a("s_sub_u32 s29, s29, 1\ns_cbranch_scc1 L_end")
def lds_wait(a, vaddr, off, need, vt, sleep=1):
    l = a.label("lw"); e = a.label("lwe")
    a(f"{l}:\nds_read_b32 v{vt}, v{vaddr} offset:{off}\ns_waitcnt lgkmcnt(0)\nv_cmp_gt_u32 vcc, {need}, v{vt}\ns_cbranch_vccz {e}")
    if sleep: a(f"s_sleep {sleep}")
    bound(a)
    a(f"s_branch {l}\n{e}:")
def tagcheck(a, acc, regs, tagop):
    a(f"v_xor_b32 v{acc}, {tagop(0)}, v{regs[0]}")
    for n, r in enumerate(regs[1:], 1): a(f"v_bitop3_b32 v{acc}, v{acc}, v{r}, {tagop(n)} bitop3:0xf6")

def build(rotx=(8, 4, 8, 2), map2="4x8", sigpos=21, tA=6, tB=9, tD=12, tK=2, tG=16, stag=1, stamps=False, cprio=2, ffn_nt="nt", noffn=False, lsleep=1):
    a = Asm()
    def stamp(n):
        if stamps: a(f"s_memrealtime s[{80+2*n}:{81+2*n}]")
    def stamps_out(base, n, wave):
        if not stamps: return
        lab = a.label("nost")
        a(f"s_waitcnt lgkmcnt(0)\ns_cmp_lg_u32 s3, {wave}\ns_cbranch_scc1 {lab}\ns_mov_b64 exec, 1")
        a(f"s_add_u32 s22, s22, {(200<<20) + base*8}\ns_addc_u32 s23, s23, 0\ns_lshl_b32 s2, s2, 8\nv_mov_b32 v1, s2")
        for i in range(n): a(f"v_mov_b32 v2, s{80+2*i}\nv_mov_b32 v3, s{81+2*i}\nglobal_store_dwordx2 v1, v[2:3], s[22:23] offset:{8*i}")
        a(f"{lab}:")
    kernel_begin(a, KNAME)
    a("s_cmp_ge_u32 s2, 256\ns_cbranch_scc1 L_end")
    a("s_load_dwordx16 s[4:19], s[0:1], 0\ns_load_dwordx2 s[20:21], s[0:1], 64\ns_load_dwordx2 s[22:23], s[0:1], 80")
    if stamps:
        for i in range(10): a(f"s_mov_b64 s[{80+2*i}:{81+2*i}], 0")
    stamp(0)
    a("v_lshrrev_b32 v1, 6, v0\nv_and_b32 v0, 63, v0\nv_readfirstlane_b32 s3, v1")
    a("s_and_b32 s24, s2, 1\ns_lshl_b32 s24, s24, 3\ns_bfe_u32 s48, s2, 0x30003\ns_add_u32 s24, s24, s48")
    a("s_bfe_u32 s25, s2, 0x20001\ns_lshl_b32 s25, s25, 2\ns_lshr_b32 s48, s2, 6\ns_add_u32 s25, s25, s48")
    if map2 == "4x8":
        a("s_and_b32 s26, s24, 8\ns_bfe_u32 s48, s2, 0x10001\ns_lshl_b32 s48, s48, 2\ns_add_u32 s26, s26, s48\ns_bfe_u32 s48, s2, 0x20003\ns_add_u32 s26, s26, s48")
        a("s_bfe_u32 s27, s2, 0x10002\ns_lshl_b32 s27, s27, 3\ns_lshr_b32 s48, s2, 5\ns_add_u32 s27, s27, s48")
        rot2 = "s_and_b32 s60, s27, 7"
    elif map2 == "2x16":
        a("s_and_b32 s26, s24, 8\ns_and_b32 s48, s2, 6\ns_add_u32 s26, s26, s48\ns_bfe_u32 s48, s2, 0x10003\ns_add_u32 s26, s26, s48\ns_lshr_b32 s27, s2, 4")
        rot2 = "s_and_b32 s60, s27, 7"
    elif map2 == "8x4":
        a("s_mov_b32 s26, s24\ns_mov_b32 s27, s25")
        rot2 = "s_and_b32 s60, s27, 3\ns_lshl_b32 s60, s60, 1"
    a("s_mov_b32 s29, 0x100000")
    a("s_cmp_ge_u32 s3, 2\ns_cbranch_scc1 L_notloader")
    a("v_lshlrev_b32 v1, 2, v0\nv_mov_b32 v2, 0x3f803f80\nv_cmp_gt_u32 vcc, 32, v0\nv_cndmask_b32 v2, 0, v2, vcc\nds_write_b32 v1, v2")
    a("v_lshrrev_b32 v2, 3, v0\nv_and_b32 v3, 7, v0")
    a("s_lshl_b32 s48, s24, 7\ns_lshl_b32 s49, s3, 3\ns_add_u32 s48, s48, s49\ns_sub_u32 s48, s48, 16")
    a("v_add_u32 v4, s48, v2\nv_bfe_u32 v5, v4, 1, 3\nv_xor_b32 v5, v5, v3\nv_lshlrev_b32 v4, 11, v4\nv_lshl_add_u32 v10, v5, 4, v4")
    for n in range(1, 9): a(f"v_add_u32 v{10+n}, {n*16*2048}, v10")
    a("s_lshl_b32 s48, s25, 7")
    for n in range(3):
        a(f"v_add_u32 v4, s49, v2\nv_add_u32 v4, {16*n}, v4\nv_mul_u32_u24 v5, 43, v4\nv_lshrrev_b32 v5, 7, v5")
        a(f"v_lshrrev_b32 v6, 1, v5\nv_and_b32 v6, 4, v6\nv_and_or_b32 v5, v5, 2, v6\nv_xor_b32 v5, v5, v3")
        a(f"v_lshlrev_b32 v4, 11, v4\nv_lshl_add_u32 v4, v5, 4, v4\nv_add_u32 v{30+n}, s48, v4")
    for n in range(3, 12): a(f"v_add_u32 v{30+n}, {(n//3)*48*2048}, v{30+n%3}")
    a(f"s_and_b32 s50, s24, 7\ns_mul_i32 s50, s50, {rotx[0]}\ns_lshr_b32 s51, s24, 3\ns_mul_i32 s51, s51, {rotx[1]}\ns_add_u32 s50, s50, s51")
    a(f"s_and_b32 s51, s25, 3\ns_mul_i32 s51, s51, {rotx[2]}\ns_add_u32 s50, s50, s51\ns_lshr_b32 s51, s25, 2\ns_mul_i32 s51, s51, {rotx[3]}\ns_add_u32 s50, s50, s51\ns_and_b32 s50, s50, 15")
    a(f"s_mul_i32 s51, s50, {64*6144}\ns_lshl_b32 s50, s50, 7")
    a(f"s_lshl_b32 s52, s3, 10\ns_add_u32 s52, s52, {L_RING}\ns_add_u32 s53, s52, {3*SLOT}\ns_mov_b32 s54, 0")
    a(f"s_lshl_b32 s48, s3, 2\ns_add_u32 s48, s48, {L_FLAG + 4*FL_L}"); sig_addr(a, 7, "s48")
    a("v_and_b32 v8, 3, v0\nv_lshlrev_b32 v8, 2, v8")
    a("s_waitcnt lgkmcnt(0)")
    srd(a, SX, 4, 4 << 20); srd(a, SA, 6, 1024 * 6144); srd(a, SB, 8, 2 << 20)
    def wait_release():
        ok = a.label("rel")
        a(f"s_sub_u32 s55, s54, 2\nds_read_b32 v9, v8 offset:{L_FLAG + 4*FL_C}\ns_waitcnt lgkmcnt(0)\nv_cmp_gt_u32 vcc, s55, v9\ns_cbranch_vccz {ok}")
        a("v_mov_b32 v9, s54\ns_waitcnt vmcnt(0)\nds_write_b32 v7, v9")
        lds_wait(a, 8, L_FLAG + 4 * FL_C, "s55", 9, sleep=lsleep)
        a(f"{ok}:")
    def next_slot():
        a(f"s_add_u32 s52, s52, {SLOT}\ns_cmp_eq_u32 s52, s53\ns_cselect_b32 s48, {3*SLOT}, 0\ns_sub_u32 s52, s52, s48\ns_add_u32 s54, s54, 1")
    a("s_branch L_ld_issue\nL_ld_loop:")
    wait_release()
    a("L_ld_issue:")
    X = [(f"s_add_u32 m0, s52, {n*2048}", 10 + n, SX, "s50") for n in range(9)]
    W = [(f"s_add_u32 m0, s52, {18432 + n*2048}", 30 + n, SA, "s51") for n in range(12)]
    L = []
    for g in range(3): L += [W[4*g], X[3*g], W[4*g+1], X[3*g+1], W[4*g+2], X[3*g+2], W[4*g+3]]
    for n, t in enumerate(L):
        dma(a, *t)
        if n == 3: a("s_cmp_lg_u32 s54, 0\ns_cbranch_scc1 L_ld_nobar\ns_barrier\nL_ld_nobar:")
        if n + 1 == sigpos: a(f"v_mov_b32 v9, s54\ns_waitcnt vmcnt({sigpos})\nds_write_b32 v7, v9")
    a(f"s_add_u32 s50, s50, 128\ns_add_u32 s51, s51, {64*6144}\ns_and_b32 s50, s50, 2047\ns_cselect_b32 s51, s51, 0")
    next_slot()
    a("s_cmp_lt_u32 s54, 3\ns_cbranch_scc1 L_ld_issue\ns_cmp_lt_u32 s54, 16\ns_cbranch_scc1 L_ld_loop")
    stamp(1)
    a("v_and_b32 v4, 6, v2\nv_xor_b32 v4, v4, v3\nv_lshlrev_b32 v5, 11, v2\nv_lshl_add_u32 v10, v4, 4, v5\ns_lshl_b32 s48, s27, 7\nv_add_u32 v10, s48, v10")
    a("L_wo_loop:")
    wait_release()
    a(f"s_sub_u32 s50, s52, {L_RING}\ns_lshl_b32 s50, s50, 4\ns_mov_b32 m0, s52\ns_mov_b32 s51, 21\nL_wo_in:")
    a(f"buffer_load_dwordx4 v10, {SR(SB)}, s50 offen lds\ns_add_u32 m0, m0, 2048\ns_add_u32 s50, s50, 32768\ns_sub_u32 s51, s51, 1\ns_cmp_lg_u32 s51, 0\ns_cbranch_scc1 L_wo_in")
    a("v_mov_b32 v9, s54\ns_waitcnt vmcnt(21)\nds_write_b32 v7, v9")
    next_slot()
    a("s_cmp_lt_u32 s54, 19\ns_cbranch_scc1 L_wo_loop")
    a("v_mov_b32 v8, 0")
    lds_wait(a, 8, L_FLAG + 4 * FL_F, "1", 9)
    a(f"s_sub_u32 s50, s53, {L_RING}\ns_lshl_b32 s50, s50, 4")
    dma(a, "s_mov_b32 m0, s53", 10, SB, "s50")
    a("v_mov_b32 v9, 32\ns_waitcnt vmcnt(0)\nds_write_b32 v7, v9")
    stamp(2)
    stamps_out(20, 3, 0)
    a("s_endpgm")
    a("L_notloader:")
    a("s_sub_u32 s48, s3, 4\ns_lshl_b32 s49, s3, 1\ns_cmp_ge_u32 s3, 4\ns_cselect_b32 s48, s48, s49\ns_cselect_b32 s56, 1, 2")
    a("s_lshl_b32 s49, s24, 7\ns_add_u32 s48, s48, s49\ns_lshl_b32 s49, s25, 3\ns_add_u32 s57, s48, s49\ns_lshl_b32 s48, s57, 11\nv_lshlrev_b32 v1, 4, v0")
    a("s_waitcnt lgkmcnt(0)")
    srd(a, SX, 4, 4 << 20); srd(a, SA, 12, 2048)
    a(f"buffer_load_dwordx4 v[132:135], v1, {SR(SX)}, s48 offen\nbuffer_load_dwordx4 v[136:139], v1, {SR(SX)}, s48 offen offset:1024")
    a(f"buffer_load_dwordx4 v[140:143], v1, {SR(SA)}, 0 offen\nbuffer_load_dwordx4 v[144:147], v1, {SR(SA)}, 0 offen offset:1024")
    a(f"s_load_dword s28, s[22:23], {W_EPOCH}")
    srd(a, SW, 22, W_SIZE)
    a("s_cmp_ge_u32 s3, 4\ns_cbranch_scc1 L_c_setup")
    a(f"buffer_load_dwordx4 v[200:203], v1, {SR(SX)}, s48 offen offset:2048\nbuffer_load_dwordx4 v[204:207], v1, {SR(SX)}, s48 offen offset:3072")
    a("s_barrier\ns_sub_u32 s3, s3, 2\ns_branch L_stats")
    a("L_c_setup:\ns_barrier\ns_sub_u32 s3, s3, 4\ns_and_b32 s30, s3, 1\ns_lshr_b32 s31, s3, 1")
    for i in range(56): a(f"v_mov_b64 v[{16+2*i}:{17+2*i}], 0")
    a("v_and_b32 v2, 15, v0\nv_lshrrev_b32 v3, 4, v0\nv_lshrrev_b32 v4, 1, v2\nv_xor_b32 v4, v4, v3\nv_lshlrev_b32 v4, 4, v4\nv_lshl_add_u32 v4, v2, 7, v4")
    a(f"v_cmp_ne_u32 vcc, 0, v2\nv_cndmask_b32 v12, 0, -1, vcc\nv_and_b32 v6, {L_RING}, v12\nv_add_u32 v6, v6, v4\nv_xor_b32 v7, 64, v6")
    a(f"s_lshl_b32 s48, s31, 13\ns_add_u32 s48, s48, {L_RING + 2048}\nv_add_u32 v4, s48, v4\nv_xor_b32 v5, 64, v4")
    tr_addr_std(a, 8, 9)
    a(f"v_lshrrev_b32 v9, 7, v8\nv_lshl_add_u32 v8, v9, 8, v8\ns_lshl_b32 s48, s30, 6\nv_xor_b32 v8, s48, v8\nv_add_u32 v8, {L_RING + 18432}, v8\nv_xor_b32 v9, 32, v8")
    a(f"s_lshl_b32 s48, s3, 2\ns_add_u32 s48, s48, {L_FLAG + 4*FL_C}"); sig_addr(a, 10, "s48")
    a("v_and_b32 v11, 1, v0\nv_lshlrev_b32 v11, 2, v11\nv_mov_b32 v13, 0")
    a("L_stats:\ns_waitcnt vmcnt(0)\nL_stats2:")
    XF, T = 148, 164
    for i in range(8): unpack(a, XF + 2 * i, 132 + i)
    for i in range(4): a(f"v_pk_add_f32 {R2(T+2*i)}, {R2(XF+4*i)}, {R2(XF+4*i+2)}")
    a(f"v_pk_add_f32 {R2(T)}, {R2(T)}, {R2(T+2)}\nv_pk_add_f32 {R2(T+4)}, {R2(T+4)}, {R2(T+6)}\nv_pk_add_f32 {R2(T)}, {R2(T)}, {R2(T+4)}\nv_add_f32 v180, v{T}, v{T+1}")
    row_reduce(a, "v_add_f32", 180); xrow_reduce(a, "v_add_f32", 180, 181)
    a("v_mul_f32 v180, 0x3a800000, v180")
    for i in range(8): a(f"v_pk_add_f32 {R2(T+2*i)}, {R2(XF+2*i)}, v[180:181] op_sel_hi:[1,0] neg_lo:[0,1] neg_hi:[0,1]")
    a(f"v_pk_mul_f32 v[182:183], {R2(T)}, {R2(T)}\nv_pk_mul_f32 v[184:185], {R2(T+2)}, {R2(T+2)}")
    for i in range(2, 8): a(f"v_pk_fma_f32 {R2(182+2*(i&1))}, {R2(T+2*i)}, {R2(T+2*i)}, {R2(182+2*(i&1))}")
    a("v_pk_add_f32 v[182:183], v[182:183], v[184:185]\nv_add_f32 v182, v182, v183")
    bf16r(a, 180, 180)
    row_reduce(a, "v_add_f32", 182)
    for i in range(8): a(f"v_pk_add_f32 {R2(T+2*i)}, {R2(XF+2*i)}, v[180:181] op_sel_hi:[1,0] neg_lo:[0,1] neg_hi:[0,1]")
    xrow_reduce(a, "v_add_f32", 182, 183)
    a("v_mul_f32 v182, 0x3a800000, v182"); bf16r(a, 182, 182)
    a("v_add_f32 v182, 0x3727c5ac, v182"); bf16r(a, 182, 182)
    a("v_sqrt_f32 v182, v182")
    for i in range(8): a(f"v_cvt_pk_bf16_f32 v{132+i}, v{T+2*i}, v{T+2*i+1}")
    bf16r(a, 182, 182)
    a("v_rcp_f32 v184, v182")
    for i in range(8): unpack(a, T + 2 * i, 132 + i)
    for i in range(8): a(f"v_pk_mul_f32 {R2(T+2*i)}, {R2(T+2*i)}, v[184:185] op_sel_hi:[1,0]")
    for i in range(8): a(f"v_cvt_pk_bf16_f32 v{132+i}, v{T+2*i}, v{T+2*i+1}")
    a("v_mov_b32 v186, 0\nv_lshrrev_b32 v182, 16, v182\nv_or_b32 v182, v182, v180")
    for i in range(8): a(f"v_dot2c_f32_bf16 v186, v{132+i}, v{140+i}")
    a("s_waitcnt lgkmcnt(0)\ns_mul_i32 s49, s28, 0x9E3779B1\ns_add_u32 s49, s49, 0x7F4A7C15\nv_mov_b32 v183, s49\nv_mov_b32 v187, s49")
    row_reduce(a, "v_add_f32", 186); xrow_reduce(a, "v_add_f32", 186, 185)
    a("v_cvt_pk_bf16_f32 v186, v186, v186\nv_ashrrev_i32 v185, 31, v186\nv_or_b32 v185, 0x80000000, v185\nv_xor_b32 v186, v186, v185\nv_and_b32 v186, 0xffff0000, v186")
    a(f"s_sub_u32 s48, 2047, s57\nv_or_b32 v186, s48, v186\ns_lshl_b32 s48, s57, 3\ns_add_u32 s50, s48, {W_KEYS}\ns_add_u32 s48, s48, {W_STATS}")
    a(f"s_mov_b64 exec, 1\nbuffer_store_dwordx2 v[186:187], off, {SR(SW)}, s50 sc1\nbuffer_store_dwordx2 v[182:183], off, {SR(SW)}, s48 sc1\ns_mov_b64 exec, -1")
    a("s_cmp_eq_u32 s56, 1\ns_cbranch_scc1 L_cons\ns_cmp_eq_u32 s56, 0\ns_cbranch_scc1 L_ffn")
    for i in range(4): a(f"v_mov_b64 v[{132+2*i}:{133+2*i}], v[{200+2*i}:{201+2*i}]")
    a("s_mov_b32 s56, 0\ns_add_u32 s57, s57, 1\ns_branch L_stats2")

    a("L_cons:\ns_mov_b32 s28, s49")
    if cprio: a(f"s_setprio {cprio}")
    def accQ(b, c): return 16 + ((b - 1) * 2 + c) * 4
    def accK(b, c): return 48 + (b * 2 + c) * 4
    def accV(b, c): return 88 + (b * 2 + c) * 4
    FR = [128, 172]
    def fx(s, b): return FR[s] + b * 4
    def fw(s, seg, c): return FR[s] + 20 + (seg * 2 + c) * 4
    def reads(s, kk):
        Wr = {}
        for seg in range(3):
            for c in range(2):
                r = fw(s, seg, c); o = seg * 128 + kk * 32 * 384
                Wr[seg, c] = [f"ds_read_b64_tr_b16 {R2(r)}, v{8+c} offset:{o}", f"ds_read_b64_tr_b16 {R2(r+2)}, v{8+c} offset:{o+4*384}"]
        X = [f"ds_read_b128 {R4(fx(s,0))}, v{6+kk}"] + [f"ds_read_b128 {R4(fx(s,b))}, v{4+kk} offset:{(b-1)*2048}" for b in range(1, 5)]
        return [X[0]] + Wr[1, 0] + Wr[1, 1] + [X[4]] + Wr[2, 0] + Wr[2, 1] + [X[1]] + Wr[0, 0] + [X[2]] + Wr[0, 1] + [X[3]]
    def mfmas(s, half):
        K = lambda b, c: f"{MF} {R4(accK(b,c))}, {R4(fw(s,1,c))}, {R4(fx(s,b))}, {R4(accK(b,c))}"
        V = lambda b, c: f"{MF} {R4(accV(b,c))}, {R4(fx(s,b))}, {R4(fw(s,2,c))}, {R4(accV(b,c))}"
        Q = lambda b, c: f"{MF} {R4(accQ(b,c))}, {R4(fw(s,0,c))}, {R4(fx(s,b))}, {R4(accQ(b,c))}"
        HV = lambda c: f"{MF} {R4(accK(0,c))}, {R4(fx(s,0))}, {R4(fw(s,2,c))}, {R4(accK(0,c))}"
        HQ = f"{MF} {R4(accV(0,0))}, {R4(fw(s,0,half))}, {R4(fx(s,0))}, {R4(accV(0,0))}"
        L = [K(0, 0), K(0, 1)] if half == 0 else [HV(0), HV(1)]
        L += [HQ, K(4, 0), K(4, 1), V(4, 0), V(4, 1)]
        for b in range(1, 4): L += [K(b, 0), K(b, 1), V(b, 0), V(b, 1)]
        L += [Q(b, c) for b in range(1, 5) for c in range(2)]
        return L
    def interleave(M, F):
        for i, m in enumerate(M):
            a(m)
            if i in F: a(F[i])
    lds_wait(a, 11, L_FLAG + 4 * FL_L, "1", 14, sleep=0)
    stamp(1)
    for r in reads(0, 0): a(r)
    a(f"s_mov_b32 s52, 0\ns_mov_b32 s53, 2\ns_cmp_eq_u32 s31, 1\ns_cbranch_scc1 L_c_loop1")
    MT, MR, RQ, RA, RB = 216, 224, 244, 248, 252
    for half in range(2):
        a(f"L_c_loop{half}:\ns_waitcnt lgkmcnt(0)")
        F = dict(enumerate(reads(1, 1)))
        F[0] += f"\ns_add_u32 s52, s52, 1\ns_cmp_eq_u32 s52, 3\ns_cselect_b32 s52, 0, s52\ns_cselect_b32 s54, {(-2*SLOT) & 0xffffffff}, {SLOT}".replace(f", {SLOT}", ", s55")
        F[17] = f"ds_read_b32 v14, v11 offset:{L_FLAG + 4*FL_L}\nv_add_u32 v13, 1, v13"
        F[18] = "v_add_u32 v8, s54, v8\nv_add_u32 v9, s54, v9"
        F[19] = "v_and_b32 v15, s54, v12\nv_add_u32 v4, s54, v4"
        F[20] = "v_add_u32 v6, v15, v6"
        F[23] = "s_waitcnt lgkmcnt(0)\nds_write_b32 v10, v13"
        F[24] = "v_cmp_gt_u32 vcc, s53, v14"
        F[25] = "s_cmp_eq_u32 s53, 17"
        interleave(mfmas(0, half), F)
        a(f"s_cbranch_scc1 L_c_last{half}\ns_cbranch_vccnz L_c_spin{half}\nL_c_go{half}:")
        F = dict(enumerate(reads(0, 0)))
        F[17] = "v_add_u32 v5, s54, v5\nv_add_u32 v7, v15, v7"
        F[18] = "s_add_u32 s53, s53, 1"
        interleave(mfmas(1, half), F)
        a(f"s_branch L_c_loop{half}\nL_c_spin{half}:")
        lds_wait(a, 11, L_FLAG + 4 * FL_L, "s53", 14, sleep=0)
        a(f"s_branch L_c_go{half}\nL_c_last{half}:")
        stamp(2)
        lds_wait(a, 11, L_FLAG + 4 * FL_F, "1", 14, sleep=0)
        F = {}
        F[0] = f"v_and_b32 v2, 15, v0\nv_lshrrev_b32 v3, 4, v0"
        F[1] = f"v_and_b32 v4, 1, v0\nv_lshlrev_b32 v5, 2, v2"
        F[2] = f"v_lshl_add_u32 v6, v3, 2, v4\nv_lshlrev_b32 v7, 4, v3"
        F[3] = f"v_cmp_le_u32 s[62:63], v6, v2\nv_add_u32 v8, 2, v6"
        F[4] = f"v_cmp_le_u32 s[64:65], v8, v2\nv_cmp_eq_u32 s[60:61], 1, v4"
        o = L_M + 256 * half
        F[5] = f"ds_read2_b32 {R2(MT)}, v5 offset0:{o//4} offset1:{o//4+16}\nv_cndmask_b32 v9, 0, 16, s[62:63]"
        F[6] = f"ds_read2_b32 {R2(MT+2)}, v5 offset0:{o//4+32} offset1:{o//4+48}\nv_cndmask_b32 v14, 0, 16, s[64:65]"
        F[7] = f"ds_read_b32 v{MT+4}, v5 offset:{o+256}\nv_add_lshl_u32 v6, v6, v9, 2"
        F[8] = f"ds_read_b128 {R4(MR)}, v7 offset:{o}\nv_add_lshl_u32 v8, v8, v14, 2"
        o2 = L_RS + 256 * half
        F[9] = f"ds_read_b128 {R4(MR+4)}, v7 offset:{o+64}\nv_add_u32 v6, {o2}, v6"
        F[10] = f"ds_read_b128 {R4(MR+8)}, v7 offset:{o+128}\nv_add_u32 v8, {o2}, v8"
        F[11] = f"ds_read_b128 {R4(MR+12)}, v7 offset:{o+192}\nv_add_u32 v9, {o2+64}, v5"
        F[12] = f"ds_read_b128 {R4(MR+16)}, v7 offset:{o+256}\ns_mul_i32 s48, s30, {EXH}\ns_add_u32 s48, s48, {L_EX}"
        F[13] = f"ds_read2_b32 {R2(RA)}, v6 offset0:0 offset1:16\nv_lshl_add_u32 v14, v0, 4, s48"
        F[14] = f"ds_read2_b32 {R2(RA+2)}, v6 offset0:32 offset1:48\nv_add_u32 v7, s48, v7"
        F[15] = f"ds_read2_b32 {R2(RB)}, v8 offset0:0 offset1:16\nv_add_u32 v5, s48, v5"
        F[16] = f"ds_read2_b32 {R2(RB+2)}, v8 offset0:32 offset1:48\ns_mov_b32 s50, 0x00010001\ns_mov_b32 s51, s50"
        F[17] = f"ds_read2_b32 {R2(RQ)}, v9 offset0:0 offset1:16"
        F[18] = f"ds_read2_b32 {R2(RQ+2)}, v9 offset0:32 offset1:48"
        F[19] = f"s_mov_b64 exec, s[50:51]\nds_write_b128 v7, {R4(accV(0,0))} offset:{6144 + 64*half}"
        if half == 0:
            F[19] += f"\nds_write_b128 v7, {R4(accK(0,0))} offset:{6144+128}\nds_write_b128 v7, {R4(accK(0,1))} offset:{6144+192}\ns_mov_b64 exec, -1"
            F[21] = f"ds_write_b128 v14, {R4(accK(4,0))}"
            F[22] = f"ds_write_b128 v14, {R4(accK(4,1))} offset:1024"
            F[23] = f"ds_write_b128 v14, {R4(accV(4,0))} offset:2048"
            F[24] = f"ds_write_b128 v14, {R4(accV(4,1))} offset:3072"
        else:
            F[19] += f"\ns_mov_b64 exec, 0xffff\nds_write_b32 v5, v{accK(0,0)} offset:{6144+256}\nds_write_b32 v5, v{accK(0,1)} offset:{6144+320}\ns_mov_b64 exec, -1"
            F[21] = f"ds_write_b128 v14, {R4(accK(0,0))} offset:4096"
            F[22] = f"ds_write_b128 v14, {R4(accK(0,1))} offset:5120"
        interleave(mfmas(1, half), F)
        a(f"s_waitcnt lgkmcnt(0)\nds_write_b32 v10, v13 offset:{4*(FL_X-FL_C)}\ns_xor_b32 s48, s3, 2\ns_lshl_b32 s48, s48, 2\nv_mov_b32 v6, s48")
        lds_wait(a, 6, L_FLAG + 4 * FL_X, "1", 8, sleep=0)
        if half == 0:
            a(f"ds_read_b128 {R4(accV(0,0))}, v14 offset:4096\nds_read_b128 {R4(accV(0,1))}, v14 offset:5120\ns_branch L_c_epi")
        else:
            a(f"ds_read_b128 {R4(accK(0,0))}, v14\nds_read_b128 {R4(accK(0,1))}, v14 offset:1024\nds_read_b128 {R4(accV(0,0))}, v14 offset:2048\nds_read_b128 {R4(accV(0,1))}, v14 offset:3072")
    a("L_c_epi:")
    CQ, CK, CV, QF, KF, VP = 128, 136, 144, 148, 164, 184
    for c in range(2): a(f"ds_read_b128 {R4(CK+4*c)}, v7 offset:{6144+128+64*c}")
    for c in range(2): a(f"ds_read_b128 {R4(CQ+4*c)}, v7 offset:{6144+64*c}")
    for c in range(2): a(f"ds_read_b32 v{CV+c}, v5 offset:{6144+256+64*c}")
    a("v_bfe_u32 v6, v0, 4, 1\nv_lshrrev_b32 v8, 5, v0\nv_lshlrev_b32 v8, 4, v8\nv_lshl_add_u32 v8, v6, 5, v8\nv_lshl_add_u32 v12, v2, 11, v8\nv_lshlrev_b32 v13, 3, v2")
    a("s_lshl_b32 s58, s26, 2\ns_add_u32 s58, s58, s3\ns_lshl_b32 s56, s58, 16\ns_lshl_b32 s48, s27, 7\ns_add_u32 s56, s56, s48\ns_add_u32 s57, s56, 32768")
    a(f"s_lshl_b32 s59, s58, 8\ns_add_u32 s59, s59, {W_STATS}")
    for i in range(2): a(f"v_pk_mul_f32 {R2(RQ+2*i)}, {R2(RQ+2*i)}, s[66:67]")
    a("v_lshlrev_b32 v4, 4, v4\ns_waitcnt lgkmcnt(0)")
    def corr_t(acc, cs, m):
        mo, ms = bc(m)
        for i in (0, 2): a(f"v_pk_fma_f32 {R2(acc+i)}, {mo}, {R2(cs+i)}, {R2(acc+i)} op_sel:[{ms},0,0] op_sel_hi:[{ms},1,1] neg_lo:[1,0,0] neg_hi:[1,0,0]")
    def pk(d, s): a(f"v_cvt_pk_bf16_f32 v{d}, v{s}, v{s+1}")
    for b in range(5):
        for c in range(2): corr_t(accK(b, c), CK + 4 * c, MT + b)
    for b in range(1, 5):
        for c in range(2): corr_t(accQ(b, c), CQ + 4 * c, MT + b)
    for b in range(5):
        for c in range(2): pk(KF + b * 4 + c * 2, accK(b, c)); pk(KF + b * 4 + c * 2 + 1, accK(b, c) + 2)
    for b in range(1, 5):
        for c in range(2): pk(QF + (b - 1) * 4 + c * 2, accQ(b, c)); pk(QF + (b - 1) * 4 + c * 2 + 1, accQ(b, c) + 2)
    B4 = range(1, 5)
    S = lambda b: 16 + (b - 1) * 8
    for b in B4:
        a(f"{MF} {R4(S(b))}, {R4(KF+b*4)}, {R4(QF+(b-1)*4)}, 0\n{MF} {R4(S(b)+4)}, {R4(KF+(b-1)*4)}, {R4(QF+(b-1)*4)}, 0")
    for b in range(5):
        for c in range(2):
            co, cs = bc(CV + c)
            for i in (0, 2): a(f"v_pk_fma_f32 {R2(accV(b,c)+i)}, {co}, {R2(MR+4*b+i)}, {R2(accV(b,c)+i)} op_sel:[{cs},0,0] op_sel_hi:[{cs},1,1] neg_lo:[1,0,0] neg_hi:[1,0,0]")
    XR, ST2 = 216, 232
    for tb in range(2):
        for p in range(2): a(f"buffer_load_dwordx4 {R4(XR+(tb*2+p)*4)}, v12, {SR(SX)}, s{56+tb} offen offset:{p*64}")
    for tb in range(2): a(f"buffer_load_dwordx2 {R2(ST2+2*tb)}, v13, {SR(SW)}, s59 offen offset:{tb*128} sc1")
    T = lambda b: 48 + (b - 1) * 4
    P = lambda b: 64 + (b - 1) * 4
    O = lambda b: 128 + (b - 1) * 8
    def each(fmt):
        for b in B4: a(fmt(b))
    each(lambda b: f"v_cndmask_b32 v{T(b)}, v{S(b)}, v{S(b)+1}, s[60:61]\nv_cndmask_b32 v{T(b)+1}, v{S(b)+2}, v{S(b)+3}, s[60:61]")
    each(lambda b: f"v_cndmask_b32 v{T(b)+2}, v{S(b)+4}, v{S(b)+5}, s[60:61]\nv_cndmask_b32 v{T(b)+3}, v{S(b)+6}, v{S(b)+7}, s[60:61]")
    each(lambda b: f"v_cndmask_b32 v{T(b)}, v{T(b)+2}, v{T(b)}, s[62:63]\nv_cndmask_b32 v{T(b)+1}, v{T(b)+3}, v{T(b)+1}, s[64:65]")
    each(lambda b: f"v_mul_f32 v{T(b)}, v{T(b)}, v{RA+b-1}\nv_mul_f32 v{T(b)+1}, v{T(b)+1}, v{RB+b-1}")
    each(lambda b: f"v_mul_f32 v{T(b)}, v{T(b)}, v{RQ+b-1}\nv_mul_f32 v{T(b)+1}, v{T(b)+1}, v{RQ+b-1}")
    a("s_or_b32 s48, s24, s31\ns_cmp_eq_u32 s48, 0\ns_cselect_b64 s[48:49], -1, 0\ns_andn2_b64 s[50:51], s[48:49], s[64:65]\ns_andn2_b64 s[48:49], s[48:49], s[62:63]\nv_mov_b32 v5, 0xce6e6b28")
    a(f"v_cndmask_b32 v{T(1)}, v{T(1)}, v5, s[48:49]\nv_cndmask_b32 v{T(1)+1}, v{T(1)+1}, v5, s[50:51]")
    def xred(op):
        each(lambda b: f"{op} v{T(b)+2}, v{T(b)}, v{T(b)+1}")
        for sw in ("16", "32"):
            each(lambda b: f"v_mov_b32 v{T(b)+3}, v{T(b)+2}")
            each(lambda b: f"v_permlane{sw}_swap_b32 v{T(b)+3}, v{T(b)+2}")
            each(lambda b: f"{op} v{T(b)+2}, v{T(b)+2}, v{T(b)+3}")
    xred("v_max_f32")
    each(lambda b: f"v_sub_f32 v{T(b)}, v{T(b)}, v{T(b)+2}\nv_sub_f32 v{T(b)+1}, v{T(b)+1}, v{T(b)+2}")
    each(lambda b: f"v_exp_f32 v{T(b)}, v{T(b)}\nv_exp_f32 v{T(b)+1}, v{T(b)+1}")
    for b in range(5):
        for c in range(2): pk(VP + c * 10 + b * 2, accV(b, c)); pk(VP + c * 10 + b * 2 + 1, accV(b, c) + 2)
    xred("v_add_f32")
    each(lambda b: f"v_rcp_f32 v{T(b)+2}, v{T(b)+2}")
    each(lambda b: f"v_mul_f32 v{T(b)}, v{T(b)}, v{RA+b-1}\nv_mul_f32 v{T(b)+1}, v{T(b)+1}, v{RB+b-1}")
    each(lambda b: f"v_mul_f32 v{T(b)}, v{T(b)}, v{T(b)+2}\nv_mul_f32 v{T(b)+1}, v{T(b)+1}, v{T(b)+2}")
    each(lambda b: f"v_cvt_pk_bf16_f32 v{T(b)+1}, v{T(b)}, v{T(b)+1}")
    each(lambda b: f"v_and_b32 v{T(b)}, 0xffff, v{T(b)+1}\nv_lshrrev_b32 v{T(b)+1}, 16, v{T(b)+1}")
    each(lambda b: f"v_lshlrev_b32 v{T(b)}, v4, v{T(b)}\nv_lshlrev_b32 v{T(b)+1}, v4, v{T(b)+1}")
    each(lambda b: f"v_cndmask_b32 v{P(b)}, v{T(b)}, 0, s[62:63]\nv_cndmask_b32 v{P(b)+1}, v{T(b)+1}, 0, s[64:65]\nv_cndmask_b32 v{P(b)+2}, 0, v{T(b)}, s[62:63]\nv_cndmask_b32 v{P(b)+3}, 0, v{T(b)+1}, s[64:65]")
    each(lambda b: f"{MF} {R4(O(b))}, {R4(VP+(b-1)*2)}, {R4(P(b))}, 0\n{MF} {R4(O(b)+4)}, {R4(VP+10+(b-1)*2)}, {R4(P(b))}, 0")
    a("s_lshl_b32 s48, s24, 1\ns_add_u32 s48, s48, s31\ns_lshl_b32 s49, s25, 1\ns_add_u32 s49, s49, s30")
    a(f"s_lshl_b32 s50, s48, 5\ns_add_u32 s50, s50, s49\ns_lshl_b32 s50, s50, 2\ns_add_u32 s50, s50, {W_OFLAG}")
    a(f"s_lshl_b32 s48, s48, 7\ns_add_u32 s48, s48, s49\ns_lshl_b32 s48, s48, 10\ns_add_u32 s48, s48, {W_O}\nv_lshlrev_b32 v1, 4, v0")
    for b in B4:
        d = 80 + (b - 1) * 4
        for i in range(4): pk(d + i, O(b) + 2 * i)
        a(f"buffer_store_dwordx4 {R4(d)}, v1, {SR(SW)}, s48 offen sc1\ns_add_u32 s48, s48, 32768")
    stamp(3)
    a("s_waitcnt vmcnt(4)\nL_c_st2:")
    tagcheck(a, 5, [ST2 + 1, ST2 + 3], lambda n: "s28")
    a("v_cmp_ne_u32 vcc, 0, v5\ns_cbranch_vccz L_c_st2ok")
    bound(a)
    for tb in range(2): a(f"buffer_load_dwordx2 {R2(ST2+2*tb)}, v13, {SR(SW)}, s59 offen offset:{tb*128} sc1")
    a("s_waitcnt vmcnt(0)\ns_branch L_c_st2\nL_c_st2ok:")
    for tb in range(2):
        r = ST2 + 2 * tb
        a(f"v_lshlrev_b32 v{r+1}, 16, v{r}\nv_and_b32 v{r}, 0xffff0000, v{r}\nv_rcp_f32 v{r+1}, v{r+1}")
    for i in range(16): unpack(a, 16 + 2 * i, XR + i)
    for tb in range(2):
        r = ST2 + 2 * tb
        a(f"v_mul_f32 v{r}, v{r}, v{r+1}\nv_add_f32 v{r+1}, 1.0, v{r+1}")
    for i in range(16):
        r = ST2 + 2 * (i // 8)
        a(f"v_pk_fma_f32 {R2(16+2*i)}, {R2(r)}, {R2(16+2*i)}, {R2(r)} op_sel:[1,0,0] op_sel_hi:[1,1,0] neg_lo:[0,0,1] neg_hi:[0,0,1]")
    a(f"v_mov_b32 v5, s28\ns_waitcnt vmcnt(0)\ns_mov_b64 exec, 1\nbuffer_store_dword v5, off, {SR(SW)}, s50 sc1\ns_mov_b64 exec, -1")
    stamp(4)
    for q in range(4):
        for i in range(4): a(f"v_permlane16_swap_b32 v{16+8*q+i}, v{20+8*q+i}")
    tr_addr_perm(a, 4, 5)
    a(f"v_add_u32 v4, {L_RING}, v4")
    for nb in range(1, 4): a(f"v_xor_b32 v{4+nb}, {nb*32}, v4")
    srd(a, SA, 22, W_SIZE); srd(a, SB, 20, 4 << 20)
    a(rot2)
    a(f"s_lshl_b32 s61, s58, 16\ns_add_u32 s61, s61, {W_O}\ns_add_u32 s62, s61, 32768\ns_lshl_b32 s63, s60, 12\ns_lshl_b32 s64, s60, 14")
    a(f"s_lshr_b32 s48, s58, 1\ns_lshl_b32 s48, s48, 7\ns_add_u32 s48, s48, {W_OFLAG}\nv_and_b32 v14, 31, v0\nv_lshlrev_b32 v14, 2, v14")
    lds_wait(a, 11, L_FLAG + 4 * FL_L, "32", 15, sleep=0)
    WF, OF = 48, 80
    def setw():
        for nb in range(4): a(f"v_add_u32 v{8+nb}, s64, v{4+nb}")
    def wread(t, nb):
        r = WF + (t & 1) * 16 + nb * 4; o = (t & 3) * 4096
        return f"ds_read_b64_tr_b16 {R2(r)}, v{8+nb} offset:{o}\nds_read_b64_tr_b16 {R2(r+2)}, v{8+nb} offset:{o+2048}"
    def oload(t, tb):
        return f"buffer_load_dwordx4 {R4(OF+(t&7)*8+tb*4)}, v1, {SR(SA)}, s{65+tb} offen offset:{(t&3)*1024} sc1"
    def onext(): return "s_add_u32 s65, s61, s63\ns_add_u32 s66, s62, s63\ns_add_u32 s63, s63, 4096\ns_and_b32 s63, s63, 0x7fff"
    setw()
    for t in range(2):
        for nb in range(4): a(wread(t, nb))
    a("L_c_poll:")
    a(f"buffer_load_dword v15, v14, {SR(SW)}, s48 offen sc1\ns_waitcnt vmcnt(0)\nv_cmp_ne_u32 vcc, s28, v15\ns_cbranch_vccz L_c_k2")
    bound(a)
    a("s_branch L_c_poll\nL_c_k2:")
    stamp(5)
    for t in range(7):
        if t & 3 == 0: a(onext())
        a(oload(t, 0)); a(oload(t, 1))
    a("s_mov_b32 s53, 0\nL_c_k2loop:")
    for t in range(8):
        if (t + 7) & 3 == 0: a(onext())
        if (t + 2) & 3 == 0:
            a("s_add_u32 s64, s64, 16384\ns_and_b32 s64, s64, 0x1ffff"); setw()
        a(oload(t + 7, 0)); a(oload(t + 7, 1))
        if t == 0: a(f"s_cmp_eq_u32 s53, 3\ns_cselect_b32 s{SA+2}, 0, s{SA+2}")
        for nb in range(4):
            a("s_waitcnt vmcnt(14) lgkmcnt(13)" if nb == 0 else "s_waitcnt lgkmcnt(13)")
            for tb in range(2):
                d = 16 + (tb * 4 + nb) * 4
                a(f"{MF} {R4(d)}, {R4(WF+(t&1)*16+nb*4)}, {R4(OF+t*8+tb*4)}, {R4(d)}")
            a(wread(t + 2, nb))
    a("s_add_u32 s53, s53, 1\ns_cmp_lt_u32 s53, 4\ns_cbranch_scc1 L_c_k2loop")
    stamp(6)
    a(f"v_and_b32 v4, 7, v0\nv_lshlrev_b32 v4, 2, v4\nds_read_b32 v5, v4 offset:{L_SEL}\nv_lshlrev_b32 v6, 4, v3\ns_waitcnt lgkmcnt(0)")
    a("v_not_b32 v5, v5\nv_and_b32 v5, 0x7ff, v5\nv_lshrrev_b32 v7, 5, v5\nv_cmp_eq_u32 vcc, s58, v7\ns_and_b32 s52, vcc_lo, 0xff\ns_cbranch_scc0 L_c_fin")
    a("v_and_b32 v11, 1, v0\nv_lshlrev_b32 v11, 2, v11")
    lds_wait(a, 11, L_FLAG + 4 * FL_U, "1", 15, sleep=0)
    a(f"L_c_upd:\ns_ff1_i32_b32 s48, s52\ns_bitset0_b32 s52, s48\nv_readlane_b32 s49, v5, s48\ns_lshl_b32 s48, s48, 8\ns_add_u32 s48, s48, {L_UPD}\nv_add_u32 v7, s48, v6")
    for nb in range(4): a(f"ds_read_b128 {R4(48+4*nb)}, v7 offset:{nb*64}")
    a("s_and_b32 s48, s49, 15\nv_cmp_eq_u32 vcc, s48, v2\ns_waitcnt lgkmcnt(0)\ns_mov_b64 exec, vcc\ns_bitcmp1_b32 s49, 4\ns_cbranch_scc1 L_c_upd1")
    for tb in range(2):
        for i in range(8): a(f"v_pk_add_f32 {R2(16+tb*16+2*i)}, {R2(16+tb*16+2*i)}, {R2(48+2*i)}")
        if tb == 0: a("s_branch L_c_upd2\nL_c_upd1:")
    a("L_c_upd2:\ns_mov_b64 exec, -1\ns_cmp_lg_u32 s52, 0\ns_cbranch_scc1 L_c_upd\nL_c_fin:")
    for i in range(16): pk(48 + i, 16 + 2 * i)
    for q in range(4):
        a(f"v_permlane16_swap_b32 v{48+4*q}, v{50+4*q}\nv_permlane16_swap_b32 v{49+4*q}, v{51+4*q}")
        a(f"buffer_store_dwordx4 {R4(48+4*q)}, v12, {SR(SB)}, s{56+(q>>1)} offen offset:{(q&1)*64}")
    if stamps: a("s_waitcnt vmcnt(0)")
    stamp(7)
    stamps_out(0, 8, 0)
    a("s_endpgm")

    a("L_ffn:\ns_mov_b32 s28, s49")
    stamp(1)
    a("v_mov_b32 v2, 0")
    a(f"s_lshl_b32 s48, s3, 2\ns_add_u32 s48, s48, {L_FLAG}"); sig_addr(a, 3, "s48")
    a("v_mov_b32 v4, 1")
    lds_wait(a, 2, L_FLAG + 4 * FL_L, str(tK), 5, sleep=2)
    a("s_cmp_eq_u32 s3, 1\ns_cbranch_scc1 L_f1_stats")
    KR = 64
    a("L_f_keys:")
    for n in range(16):
        if n & 3 == 0: a(f"s_mov_b32 s48, {W_KEYS + n*1024}")
        a(f"buffer_load_dwordx4 {R4(KR+4*n)}, v1, {SR(SW)}, s48 offen offset:{(n&3)*1024} sc1")
    a("s_waitcnt vmcnt(0)")
    tagcheck(a, 5, [KR + 2 * n + 1 for n in range(32)], lambda n: "s28")
    a("v_cmp_ne_u32 vcc, 0, v5\ns_cbranch_vccz L_f_keysok\ns_sleep 8")
    bound(a)
    a("s_branch L_f_keys\nL_f_keysok:")
    stamp(2)
    a(f"s_cmp_lg_u32 s2, 0\ns_cbranch_scc1 L_f_noepoch\nv_mov_b32 v5, s28\ns_mov_b64 exec, 1\nbuffer_store_dword v5, off, {SR(SW)}, 0 offset:{W_EPOCH} sc1\ns_mov_b64 exec, -1\nL_f_noepoch:")
    a(f"v_max_u32 v5, v{KR}, v{KR+2}")
    for n in range(2, 32, 2): a(f"v_max3_u32 v5, v5, v{KR+2*n}, v{KR+2*n+2}")
    a("s_mov_b32 s48, 0\ns_mov_b32 s49, 31\nL_f_thr:\ns_mov_b32 s50, s48\ns_bitset1_b32 s50, s49\nv_cmp_le_u32 vcc, s50, v5\ns_bcnt1_i32_b64 s51, vcc\ns_cmp_ge_u32 s51, 8\ns_cselect_b32 s48, s50, s48")
    a("s_sub_u32 s49, s49, 1\ns_cmp_ge_u32 s49, 16\ns_cbranch_scc1 L_f_thr")
    for r in range(4): a(f"s_mov_b64 s[{60+2*r}:{61+2*r}], 0")
    a("s_mov_b32 s52, 8\nL_f_round:\nv_cmp_le_u32 vcc, s48, v5\ns_cbranch_vccz L_f_seldone\nL_f_ins:\ns_ff1_i32_b64 s49, vcc\ns_bitset0_b64 vcc, s49\nv_readlane_b32 s50, v5, s49")
    for r in range(8):
        x, y = (50, 51) if r % 2 == 0 else (51, 50)
        a(f"s_min_u32 s{y}, s{60+r}, s{x}\ns_max_u32 s{60+r}, s{60+r}, s{x}")
    a("s_cmp_lg_u64 vcc, 0\ns_cbranch_scc1 L_f_ins")
    a("s_mov_b32 s48, s67\ns_sub_u32 s52, s52, 1\ns_cmp_eq_u32 s52, 0\ns_cbranch_scc1 L_f_seldone\nv_subrev_u32 v5, 1, v5")
    for n in range(32): a(f"v_sub_u32 v{KR+2*n+1}, v5, v{KR+2*n}")
    a(f"v_min_u32 v6, v{KR+1}, v{KR+3}")
    for n in range(2, 32, 2): a(f"v_min3_u32 v6, v6, v{KR+2*n+1}, v{KR+2*n+3}")
    a("v_sub_u32 v5, v5, v6\ns_branch L_f_round\nL_f_seldone:")
    a("v_mov_b32 v5, s60")
    for r in range(1, 8): a(f"v_writelane_b32 v5, s{60+r}, {r}")
    a(f"v_lshlrev_b32 v6, 2, v0\ns_mov_b64 exec, 0xff\nds_write_b32 v6, v5 offset:{L_SEL}\ns_mov_b64 exec, -1\ns_waitcnt lgkmcnt(0)\nds_write_b32 v3, v4 offset:{4*FL_SEL}")
    stamp(3)
    a("s_branch L_f_common")
    a("L_f1_stats:\ns_lshl_b32 s48, s24, 7\ns_sub_u32 s48, s48, 16\nv_add_u32 v5, s48, v0\nv_lshlrev_b32 v6, 3, v5\nv_max_i32 v5, 0, v6\nv_add_u32 v6, 512, v6")
    a(f"v_and_b32 v7, 15, v0\nv_add_u32 v8, s48, v7\nv_lshlrev_b32 v8, 3, v8\nv_add_u32 v8, 1024, v8\ns_mov_b32 s48, {W_STATS}\nL_f1_poll:")
    a(f"buffer_load_dwordx2 v[10:11], v5, {SR(SW)}, s48 offen sc1\nbuffer_load_dwordx2 v[12:13], v6, {SR(SW)}, s48 offen sc1\nbuffer_load_dwordx2 v[14:15], v8, {SR(SW)}, s48 offen sc1\ns_waitcnt vmcnt(0)")
    tagcheck(a, 9, [11, 13, 15], lambda n: "s28")
    a("v_cmp_ne_u32 vcc, 0, v9\ns_cbranch_vccz L_f1_ok\ns_sleep 8")
    bound(a)
    a("s_branch L_f1_poll\nL_f1_ok:")
    for r in (10, 12, 14): a(f"v_lshlrev_b32 v{r+1}, 16, v{r}\nv_and_b32 v{r}, 0xffff0000, v{r}\nv_rcp_f32 v{r+1}, v{r+1}")
    a("v_lshlrev_b32 v5, 2, v0\nv_lshlrev_b32 v7, 2, v7")
    a(f"ds_write_b32 v5, v10 offset:{L_M}\nds_write_b32 v5, v12 offset:{L_M+256}\nds_write_b32 v7, v14 offset:{L_M+512}")
    a(f"ds_write_b32 v5, v11 offset:{L_RS}\nds_write_b32 v5, v13 offset:{L_RS+256}\nds_write_b32 v7, v15 offset:{L_RS+512}")
    a("L_f_common:\ns_and_b32 s48, s25, 7\ns_cmp_eq_u32 s48, 3\ns_cbranch_scc1 L_f_noffn")
    if noffn: a(f"ds_write_b32 v3, v4 offset:{4*FL_F}\ns_branch L_f_done")
    a("s_add_u32 s48, s25, 4\ns_lshr_b32 s48, s48, 3\ns_sub_u32 s48, s25, s48\ns_lshl_b32 s48, s48, 4\ns_add_u32 s58, s48, s24\ns_lshr_b32 s56, s58, 2\ns_and_b32 s57, s58, 3")
    a("s_cmp_eq_u32 s3, 0\ns_cselect_b32 s48, s14, s16\ns_cselect_b32 s49, s15, s17")
    srd(a, SA, 48, 1024 * 7168); srd(a, SB, 18, 3584 * 2048)
    a("v_lshrrev_b32 v5, 3, v0\nv_and_b32 v6, 7, v0\nv_and_b32 v7, 2, v5\nv_xor_b32 v7, v7, v6\nv_mul_u32_u24 v8, 7168, v5\nv_lshl_add_u32 v8, v7, 4, v8\nv_xor_b32 v9, 64, v8")
    a("v_and_b32 v7, 6, v5\nv_xor_b32 v7, v7, v6\nv_lshlrev_b32 v5, 11, v5\nv_lshl_add_u32 v10, v7, 4, v5")
    a(f"s_lshl_b32 s59, s3, 14\ns_add_u32 s59, s59, {L_STG}\ns_mul_i32 s54, s57, {256*7168}\ns_lshl_b32 s48, s56, 7\ns_add_u32 s54, s54, s48")
    tr_addr_std(a, 12, 13)
    a("v_add_u32 v12, s59, v12")
    for cb in range(1, 4): a(f"v_xor_b32 v{12+cb}, {cb*32}, v12")
    if stag: a(f"s_lshr_b32 s55, s2, 3\ns_and_b32 s55, s55, {stag}")
    else: a("s_mov_b32 s55, 0")
    CF, DF, XS = 128, 64, 32
    for burst, thr in enumerate((tA, tB)):
        a(f"s_add_u32 s48, s55, {thr}")
        lds_wait(a, 2, L_FLAG + 4 * FL_L, "s48", 5, sleep=4)
        l = a.label("gb")
        a(f"s_mov_b32 m0, s59\ns_mov_b32 s51, 8\n{l}:")
        a(f"buffer_load_dwordx4 v8, {SR(SA)}, s54 offen {ffn_nt} lds\ns_add_u32 m0, m0, 1024\ns_add_u32 s54, s54, {8*7168}")
        a(f"buffer_load_dwordx4 v9, {SR(SA)}, s54 offen {ffn_nt} lds\ns_add_u32 m0, m0, 1024\ns_add_u32 s54, s54, {8*7168}")
        a(f"s_sub_u32 s51, s51, 1\ns_cmp_lg_u32 s51, 0\ns_cbranch_scc1 {l}\ns_waitcnt vmcnt(0)")
        for kk in range(4):
            for cb in range(4):
                r = CF + ((burst * 4 + kk) * 4 + cb) * 4
                a(f"ds_read_b64_tr_b16 {R2(r)}, v{12+cb} offset:{kk*4096}\nds_read_b64_tr_b16 {R2(r+2)}, v{12+cb} offset:{kk*4096+512}")
        a("s_waitcnt lgkmcnt(0)")
    a(f"s_add_u32 s48, s55, {tD}")
    lds_wait(a, 2, L_FLAG + 4 * FL_L, "s48", 5, sleep=4)
    a("s_lshl_b32 s54, s56, 17\ns_lshl_b32 s48, s57, 9\ns_add_u32 s54, s54, s48\ns_lshl_b32 s48, s3, 8\ns_add_u32 s54, s54, s48")
    a(f"s_mov_b32 m0, s59\ns_mov_b32 s51, 8\nL_f_db:")
    a(f"buffer_load_dwordx4 v10, {SR(SB)}, s54 offen {ffn_nt} lds\ns_add_u32 m0, m0, {8192-128}\ns_nop 0")
    a(f"buffer_load_dwordx4 v10, {SR(SB)}, s54 offen offset:128 {ffn_nt} lds\ns_sub_u32 m0, m0, {8192-128-1024}\ns_add_u32 s54, s54, {8*2048}")
    a("s_sub_u32 s51, s51, 1\ns_cmp_lg_u32 s51, 0\ns_cbranch_scc1 L_f_db")
    lds_wait(a, 2, L_FLAG + 4 * FL_SEL, "1", 5, sleep=2)
    a(f"v_lshlrev_b32 v6, 2, v6\nds_read_b32 v5, v6 offset:{L_SEL}\nv_lshrrev_b32 v7, 4, v0\ns_waitcnt lgkmcnt(0)\nv_not_b32 v5, v5\nv_and_b32 v5, 0x7ff, v5")
    a(f"v_lshlrev_b32 v8, 11, v5\nv_lshl_add_u32 v8, v7, 4, v8\nv_lshlrev_b32 v9, 3, v5\ns_lshl_b32 s48, s57, 9\ns_mov_b32 s49, {W_STATS}")
    for kk in range(8): a(f"buffer_load_dwordx4 {R4(XS+4*kk)}, v8, {SR(SX)}, s48 offen offset:{kk*64}")
    a(f"L_f_sst:\nbuffer_load_dwordx2 v[10:11], v9, {SR(SW)}, s49 offen sc1")
    tr_addr_perm(a, 12, 13)
    a("v_add_u32 v12, s59, v12")
    for cb in range(1, 4): a(f"v_xor_b32 v{12+cb}, {cb*32}, v12")
    a("s_waitcnt vmcnt(0)\nv_cmp_ne_u32 vcc, s28, v11\ns_cbranch_vccz L_f_sstok")
    bound(a)
    a("s_branch L_f_sst\nL_f_sstok:")
    for nb in range(8):
        for kk in range(2):
            r = DF + (nb * 2 + kk) * 4; o = (nb >> 2) * 8192 + kk * 4096
            a(f"ds_read_b64_tr_b16 {R2(r)}, v{12+(nb&3)} offset:{o}\nds_read_b64_tr_b16 {R2(r+2)}, v{12+(nb&3)} offset:{o+2048}")
    a("v_lshlrev_b32 v11, 16, v10\nv_and_b32 v10, 0xffff0000, v10\nv_rcp_f32 v11, v11\nv_xor_b32 v10, 0x80000000, v10")
    a("s_mov_b32 s48, 0x3f803f80\ns_mov_b32 s49, s48\ns_mov_b32 exec_lo, 0x01000100\ns_mov_b32 exec_hi, 0x01000100")
    for i in range(16): a(f"v_mov_b64 v[{XS+2*i}:{XS+2*i+1}], s[48:49]")
    a(f"s_mov_b64 exec, -1\ns_waitcnt lgkmcnt(0)\nds_write_b32 v3, v4 offset:{4*FL_F}")
    stamp(4)
    a("s_and_b32 s60, s28, 0xff\ns_bfe_u32 s61, s28, 0x80008\ns_bfe_u32 s62, s28, 0x80010\ns_lshr_b32 s63, s28, 24\nv_mov_b32 v9, 0xffffff00")
    a("v_and_b32 v8, 3, v0\nv_lshlrev_b32 v8, 2, v8")
    lds_wait(a, 8, L_FLAG + 4 * FL_C, str(tG), 5, sleep=2)
    for kk in range(8):
        for cb in range(4):
            a(f"{MF} {R4(16+4*cb)}, {R4(CF+(kk*4+cb)*4)}, {R4(XS+4*kk)}, " + ("0" if kk == 0 else R4(16 + 4 * cb)))
    a("v_and_b32 v6, 7, v0\nv_lshl_add_u32 v8, v7, 3, v6\nv_lshlrev_b32 v8, 4, v8")
    a(f"s_lshl_b32 s48, s58, 1\ns_add_u32 s48, s48, s3\ns_lshl_b32 s48, s48, 11\ns_add_u32 s48, s48, {W_GU}")
    for i in range(16): a(f"v_fmac_f32_dpp v{16+i}, v{16+i}, v10 row_newbcast:8 {DPPF}")
    for i in range(8): a(f"v_pk_mul_f32 {R2(16+2*i)}, v[10:11], {R2(16+2*i)} op_sel:[1,0] op_sel_hi:[1,1]")
    for i in range(16): a(f"v_and_or_b32 v{16+i}, v{16+i}, v9, s{60+(i&3)}")
    a("s_mov_b32 exec_lo, 0x00ff00ff\ns_mov_b32 exec_hi, 0x00ff00ff")
    for cb in range(4): a(f"buffer_store_dwordx4 {R4(16+4*cb)}, v8, {SR(SW)}, s48 offen offset:{cb*512} sc1")
    a("s_mov_b64 exec, -1")
    stamp(5)
    a(f"v_bfe_u32 v5, v0, 3, 1\nv_lshl_add_u32 v8, v5, 13, v8\ns_lshl_b32 s48, s56, 14\ns_lshl_b32 s49, s3, 10\ns_add_u32 s48, s48, s49\ns_add_u32 s48, s48, {W_GU}\ns_add_u32 s49, s48, 4096")
    G = 128
    a("L_f_gu:")
    for qq in range(2):
        for m in range(2):
            for cb in range(2): a(f"buffer_load_dwordx4 {R4(G+((qq*2+m)*2+cb)*4)}, v8, {SR(SW)}, s{48+qq} offen offset:{m*2048+cb*512} sc1")
    a("s_waitcnt vmcnt(0)")
    tagcheck(a, 5, [G + n for n in range(32)], lambda n: f"s{60+(n&3)}")
    a("v_and_b32 v5, 0xff, v5\nv_cmp_ne_u32 vcc, 0, v5\ns_cbranch_vccz L_f_guok\ns_sleep 2")
    bound(a)
    a("s_branch L_f_gu\nL_f_guok:")
    stamp(6)
    for i in range(8): a(f"v_pk_add_f32 {R2(G+2*i)}, {R2(G+2*i)}, {R2(G+16+2*i)}")
    for i in range(16): a(f"v_add_f32_dpp v{G+i}, v{G+i}, v{G+i} row_ror:8 {DPPF}")
    for i in range(8): a(f"v_mul_f32 v{G+16+i}, 0xbfb8aa3b, v{G+i}")
    for i in range(8): a(f"v_exp_f32 v{G+16+i}, v{G+16+i}")
    for i in range(8): a(f"v_add_f32 v{G+16+i}, 1.0, v{G+16+i}")
    for i in range(8): a(f"v_rcp_f32 v{G+16+i}, v{G+16+i}")
    for i in range(4): a(f"v_pk_mul_f32 {R2(G+2*i)}, {R2(G+2*i)}, {R2(G+8+2*i)}")
    for i in range(4): a(f"v_pk_mul_f32 {R2(G+2*i)}, {R2(G+2*i)}, {R2(G+16+2*i)}")
    for i in range(4): pk(16 + i, G + 2 * i)
    a(f"s_lshl_b32 s48, s3, 10\ns_add_u32 s48, s48, {L_HX}\nv_add_u32 v5, s48, v1\nv_add_u32 v12, {L_HX}, v1\nds_write_b128 v5, v[16:19]\ns_waitcnt lgkmcnt(0)\nds_write_b32 v3, v4 offset:{4*FL_H}")
    a("v_and_b32 v8, 1, v0\nv_lshlrev_b32 v8, 2, v8")
    lds_wait(a, 8, L_FLAG + 4 * FL_H, "1", 5, sleep=0)
    a("ds_read_b128 v[16:19], v12\nds_read_b128 v[20:23], v12 offset:1024\ns_waitcnt lgkmcnt(0)")
    for kk in range(2):
        for nb in range(8):
            a(f"{MF} {R4(G+4*nb)}, {R4(DF+(nb*2+kk)*4)}, {R4(16+4*kk)}, " + ("0" if kk == 0 else R4(G + 4 * nb)))
    a(f"v_mul_u32_u24 v8, {56*256}, v6\nv_lshl_add_u32 v8, v7, 4, v8\nv_bfe_u32 v5, v0, 3, 1\nv_lshl_add_u32 v8, v5, 6, v8")
    a(f"s_lshl_b32 s48, s57, 1\ns_add_u32 s48, s48, s3\ns_mul_i32 s48, s48, {2*8*56*256}\ns_lshl_b32 s49, s56, 8\ns_add_u32 s48, s48, s49\ns_add_u32 s48, s48, {W_YP}\ns_add_u32 s49, s48, {8*56*256}")
    for p in range(4):
        for i in range(4): a(f"v_mov_b32_dpp v{G+8*p+i}, v{G+8*p+4+i} row_ror:8 row_mask:0xf bank_mask:0xc")
    for p in range(4):
        for i in range(4): a(f"v_and_or_b32 v{G+8*p+i}, v{G+8*p+i}, v9, s{60+i}")
        a(f"buffer_store_dwordx4 {R4(G+8*p)}, v8, {SR(SW)}, s{48+(p>>1)} offen offset:{(p&1)*128} sc1")
    stamp(7)
    a("s_branch L_f_upd")
    a("L_f_noffn:")
    lds_wait(a, 2, L_FLAG + 4 * FL_SEL, "1", 5, sleep=2)
    a(f"ds_write_b32 v3, v4 offset:{4*FL_F}")
    a("s_and_b32 s60, s28, 0xff\ns_bfe_u32 s61, s28, 0x80008\ns_bfe_u32 s62, s28, 0x80010\ns_lshr_b32 s63, s28, 24")
    if noffn: a("s_branch L_f_done")
    lds_wait(a, 2, L_FLAG + 4 * FL_L, "32", 5, sleep=8)
    a(f"L_f_upd:\nv_and_b32 v6, 7, v0\nv_lshlrev_b32 v6, 2, v6\nds_read_b32 v12, v6 offset:{L_SEL}\ns_waitcnt lgkmcnt(0)")
    a("v_not_b32 v5, v12\nv_bfe_u32 v5, v5, 7, 4\nv_cmp_eq_u32 vcc, s26, v5\ns_lshl_b32 s48, 0x55, s3\ns_and_b32 s52, vcc_lo, s48\ns_cbranch_scc0 L_f_done")
    a("v_and_b32 v13, 15, v0\nv_lshlrev_b32 v13, 4, v13")
    a(f"L_f_tok:\ns_ff1_i32_b32 s53, s52\ns_bitset0_b32 s52, s53\nv_readlane_b32 s50, v12, s53\ns_lshl_b32 s48, s27, 3\ns_add_u32 s48, s48, s53\ns_mul_i32 s54, s48, {56*256}\ns_add_u32 s54, s54, {W_YP}")
    a("s_and_b32 s50, s50, 0xffff0000\ns_ashr_i32 s51, s50, 31\ns_not_b32 s51, s51\ns_or_b32 s51, s51, 0x80000000\ns_xor_b32 s50, s50, s51\ns_and_b32 s50, s50, 0xffff0000")
    a("v_mov_b32 v14, s50\nv_mul_f32 v14, 0xbfb8aa3b, v14\nv_exp_f32 v14, v14\nv_add_f32 v14, 1.0, v14\nv_rcp_f32 v14, v14")
    a("L_f_y:\ns_mov_b32 s48, s54")
    for n in range(14):
        a(f"buffer_load_dwordx4 {R4(G+4*n)}, v1, {SR(SW)}, s48 offen offset:{(n&3)*1024} sc1")
        if n & 3 == 3: a("s_add_u32 s48, s48, 4096")
    a("s_waitcnt vmcnt(0)")
    tagcheck(a, 5, [G + n for n in range(56)], lambda n: f"s{60+(n&3)}")
    a("v_and_b32 v5, 0xff, v5\nv_cmp_ne_u32 vcc, 0, v5\ns_cbranch_vccz L_f_yok\ns_sleep 4")
    bound(a)
    a("s_branch L_f_y\nL_f_yok:")
    for n in range(2, 14):
        d = G + 4 * (n & 1)
        a(f"v_pk_add_f32 {R2(d)}, {R2(d)}, {R2(G+4*n)}\nv_pk_add_f32 {R2(d+2)}, {R2(d+2)}, {R2(G+4*n+2)}")
    a(f"v_pk_add_f32 {R2(G)}, {R2(G)}, {R2(G+4)}\nv_pk_add_f32 {R2(G+2)}, {R2(G+2)}, {R2(G+6)}")
    for sw in ("16", "32"):
        for i in range(4): a(f"v_mov_b32 v{G+4+i}, v{G+i}")
        for i in range(4): a(f"v_permlane{sw}_swap_b32 v{G+4+i}, v{G+i}")
        a(f"v_pk_add_f32 {R2(G)}, {R2(G)}, {R2(G+4)}\nv_pk_add_f32 {R2(G+2)}, {R2(G+2)}, {R2(G+6)}")
    a(f"v_pk_mul_f32 {R2(G)}, {R2(G)}, v[14:15] op_sel_hi:[1,0]\nv_pk_mul_f32 {R2(G+2)}, {R2(G+2)}, v[14:15] op_sel_hi:[1,0]")
    a(f"s_lshl_b32 s48, s53, 8\ns_add_u32 s48, s48, {L_UPD}\nv_add_u32 v5, s48, v13\ns_mov_b64 exec, 0xffff\nds_write_b128 v5, {R4(G)}\ns_mov_b64 exec, -1\ns_waitcnt lgkmcnt(0)")
    a("s_cmp_lg_u32 s52, 0\ns_cbranch_scc1 L_f_tok")
    a(f"L_f_done:\nds_write_b32 v3, v4 offset:{4*FL_U}")
    stamp(8)
    stamps_out(10, 9, 0)
    a("L_end:\ns_endpgm")
    txt = a.text().replace("L_cons:\n", f"L_cons:\n    s_mov_b32 s55, {SLOT}\n    s_mov_b32 s66, 0x3e8293ee\n    s_mov_b32 s67, 0x3e8293ee\n")
    lines, n = hazard.fix(txt.split("\n"))
    head = f"; @launch grid=(256,1,1) block=(512,1,1) lds={LDS_BYTES}\n" + '.amdgcn_target "amdgcn-amd-amdhsa--gfx950"\n'
    return head + "\n".join(lines) + kernel_desc(KNAME, 256)

if __name__ == "__main__":
    open(sys.argv[1] if len(sys.argv) > 1 else "fused.s", "w").write(build())
```
